```python
import torch

def _softmax(x, axis=-1):
    return torch.softmax(x, dim=axis)
def _gelu(x):
    return torch.nn.functional.gelu(x, approximate="tanh")
def _silu(x):
    return torch.nn.functional.silu(x)
def _sigmoid(x):
    return torch.sigmoid(x)
def _layernorm(x, axis=-1, eps=1e-5):
    m = x.mean(dim=axis, keepdim=True)
    v = x.var(dim=axis, keepdim=True, unbiased=False)
    return (x - m) / torch.sqrt(v + eps)
def _scatter_add(tgt, idx, src, axis=0):
    return tgt.clone().index_add_(axis, idx, src)
def _segment_sum(src, seg, n):
    out = torch.zeros((n,) + src.shape[1:], dtype=src.dtype)
    return out.index_add_(0, seg, src)
def _pad(x, pw):
    flat = tuple(v for pair in reversed(pw) for v in pair)
    return torch.nn.functional.pad(x, flat)

kernel_name = 'concat_heads__sliding_block_cached__mha_block_cached__decode'

def setup_inputs():

    _w = (lambda a: (lambda t: t.to(torch.bfloat16) if t.is_floating_point() else t)(torch.as_tensor(a)))
    def _A_setup():
        B, Sq, D = 8, 1, 640
        Hq, Hkv, Sk, Dh = 32, 32, 4096, 128
        assert Hq % Hkv == 0, (Hq, Hkv)
        return {
            "x": _w((lambda *s: torch.randn(*s, dtype=torch.bfloat16) * 0.8)(B, Sq, D)),
            "k_cache": _w((lambda *s: torch.randn(*s, dtype=torch.bfloat16) * 1.6)(B, Hkv, Sk, Dh)),
            "v_cache": _w((lambda *s: torch.randn(*s, dtype=torch.bfloat16) * 0.2)(B, Hkv, Sk, Dh)),
            "wq": _w((lambda *s: torch.randn(*s, dtype=torch.bfloat16) * 1.6)(D, Hq * Dh) * (D ** -0.5)),
            "wo": _w((lambda *s: torch.randn(*s, dtype=torch.bfloat16) * 0.2)(Hq * Dh, D) * ((Hq * Dh) ** -0.5)),
        }
    _A_in = _A_setup()

    def _B_setup():
        B, Sq, D = 8, 1, 640
        H, Sk, Dh = 32, 4096, 128
        return {
            "x": _w((lambda *s: torch.randn(*s, dtype=torch.bfloat16) * 0.8)(B, Sq, D)),
            "k_cache": _w((lambda *s: torch.randn(*s, dtype=torch.bfloat16) * 1.6)(B, H, Sk, Dh)),
            "v_cache": _w((lambda *s: torch.randn(*s, dtype=torch.bfloat16) * 0.2)(B, H, Sk, Dh)),
            "wq": _w((lambda *s: torch.randn(*s, dtype=torch.bfloat16) * 1.6)(D, H * Dh) * (D ** -0.5)),
            "wo": _w((lambda *s: torch.randn(*s, dtype=torch.bfloat16) * 0.2)(H * Dh, D) * ((H * Dh) ** -0.5)),
        }
    _B_in = _B_setup()

    return {
        "A_x": _A_in["x"],
        "A_k_cache": _A_in["k_cache"],
        "A_v_cache": _A_in["v_cache"],
        "A_wq": _A_in["wq"],
        "A_wo": _A_in["wo"],
        "B_x": _B_in["x"],
        "B_k_cache": _B_in["k_cache"],
        "B_v_cache": _B_in["v_cache"],
        "B_wq": _B_in["wq"],
        "B_wo": _B_in["wo"],
    }

def reference(A_x, A_k_cache, A_v_cache, A_wq, A_wo, B_x, B_k_cache, B_v_cache, B_wq, B_wo):
    def _A_ref(x, k_cache, v_cache, wq, wo):
        B, Sq, D = x.shape
        Hq, Dh = 32, 128
        Hkv, Sk = k_cache.shape[1], k_cache.shape[2]
        W = min(4096, max(256, Sk // 4))
        rep = Hq // Hkv
        q = (lambda x, *d: x.permute(*d))((x @ wq).reshape(B, Sq, Hq, Dh), 0, 2, 1, 3)
        k = (lambda x, n, axis: torch.repeat_interleave(x, n, dim=axis))(k_cache[:, :, Sk - W:, :], rep, axis=1)
        v = (lambda x, n, axis: torch.repeat_interleave(x, n, dim=axis))(v_cache[:, :, Sk - W:, :], rep, axis=1)
        scores = torch.einsum("bhqd,bhkd->bhqk", q, k) * (Dh ** -0.5)
        p = _softmax(scores, axis=-1)
        o = torch.einsum("bhqk,bhkd->bhqd", p, v)
        return (lambda x, *d: x.permute(*d))(o, 0, 2, 1, 3).reshape(B, Sq, Hq * Dh) @ wo

    def _B_ref(x, k_cache, v_cache, wq, wo):
        B, Sq, D = x.shape
        H, Dh = 32, 128
        q = (lambda x, *d: x.permute(*d))((x @ wq).reshape(B, Sq, H, Dh), 0, 2, 1, 3)
        scores = torch.einsum("bhqd,bhkd->bhqk", q, k_cache) * (Dh ** -0.5)
        p = _softmax(scores, axis=-1)
        o = torch.einsum("bhqk,bhkd->bhqd", p, v_cache)
        return (lambda x, *d: x.permute(*d))(o, 0, 2, 1, 3).reshape(B, Sq, H * Dh) @ wo

    a = _A_ref(A_x, A_k_cache, A_v_cache, A_wq, A_wo)
    b = _B_ref(B_x, B_k_cache, B_v_cache, B_wq, B_wo)
    return torch.concatenate([a, b], axis=-1)
```

```python
import re

def _regs(tok):
    tok = tok.strip()
    tok = tok.lstrip('-')
    m = re.fullmatch(r'abs\((.*)\)', tok)
    if m: tok = m.group(1)
    m = re.fullmatch(r'\|(.*)\|', tok)
    if m: tok = m.group(1)
    m = re.fullmatch(r'([vs])(\d+)', tok)
    if m: return [(m.group(1), int(m.group(2)))]
    m = re.fullmatch(r'([vs])\[(\d+):(\d+)\]', tok)
    if m: return [(m.group(1), i) for i in range(int(m.group(2)), int(m.group(3)) + 1)]
    if tok == 'vcc': return [('s', 'vcc')]
    if tok == 'exec': return [('s', 'exec')]
    if tok == 'm0': return [('s', 'm0')]
    return []

TRANS = ('v_exp_f32', 'v_log_f32', 'v_rcp_f32', 'v_rsq_f32', 'v_sqrt_f32')

class Ins:
    __slots__ = ('text', 'op', 'w', 'r', 'cls', 'states')
    def __init__(self, text):
        self.text = text
        body = text.split(';')[0].strip()
        parts = body.split(None, 1)
        self.op = parts[0]
        ops = []
        if len(parts) > 1:
            depth = 0; cur = ''
            for ch in parts[1]:
                if ch in '[(': depth += 1
                if ch in '])': depth -= 1
                if ch == ',' and depth == 0:
                    ops.append(cur.strip()); cur = ''
                else:
                    cur += ch
            ops.append(cur.strip())
        if ops:
            ops[-1] = ops[-1].split()[0] if ops[-1] else ops[-1]
        op = self.op
        self.w = []; self.r = []; self.cls = 'other'; self.states = 1
        mods = body
        if op == 's_nop':
            self.cls = 'nop'; self.states = int(ops[0], 0) + 1
        elif op.startswith('v_'):
            self.cls = 'valu'
            if op.startswith('v_permlane') and 'swap' in op:
                self.w = _regs(ops[0]) + _regs(ops[1]); self.r = list(self.w); self.cls = 'permlane'
            elif op.startswith('v_cmp'):
                self.w = _regs(ops[0]); self.r = sum((_regs(o) for o in ops[1:]), [])
                if op.startswith('v_cmpx'): self.w += [('s', 'exec')]
            elif op.startswith('v_readfirstlane') or op.startswith('v_readlane'):
                self.w = _regs(ops[0]); self.r = sum((_regs(o) for o in ops[1:]), []); self.cls = 'readlane'
            elif op.startswith(('v_add_co', 'v_sub_co', 'v_addc_co')):
                self.w = _regs(ops[0]) + _regs(ops[1]); self.r = sum((_regs(o) for o in ops[2:]), [])
            else:
                self.w = _regs(ops[0]); self.r = sum((_regs(o) for o in ops[1:]), [])
                if op.startswith(('v_fmac', 'v_dot2c', 'v_pk_fmac')): self.r += self.w
                if op.startswith('v_mfma'): self.cls = 'mfma'
                elif op.startswith('v_dot'): self.cls = 'dot'
                elif op.replace('_e32', '').replace('_e64', '') in TRANS: self.cls = 'trans'
            if '_dpp' in op or 'row_' in mods or 'quad_perm' in mods:
                self.cls = 'dpp' if self.cls in ('valu',) else self.cls + '+dpp'
                self.r += self.w
        elif op.startswith(('buffer_', 'global_')):
            self.cls = 'vmem'
            if 'load' in op and ' lds' not in mods:
                self.w = _regs(ops[0]); self.r = sum((_regs(o) for o in ops[1:]), [])
            elif 'atomic' in op:
                self.r = sum((_regs(o) for o in ops), [])
                if 'sc0' in mods: self.w = _regs(ops[0])
            else:
                self.r = sum((_regs(o) for o in ops), [])
                if 'store' in op and ('x4' in op or 'x3' in op):
                    self.cls = 'vmem_wstore'
        elif op.startswith('ds_'):
            self.cls = 'ds'
            if 'read' in op or 'permute' in op or 'swizzle' in op:
                self.w = _regs(ops[0]); self.r = sum((_regs(o) for o in ops[1:]), [])
            else:
                self.r = sum((_regs(o) for o in ops), [])
        elif op.startswith('s_'):
            self.cls = 'salu'
            if op.startswith(('s_cmp', 's_cbranch', 's_branch', 's_waitcnt', 's_barrier', 's_endpgm', 's_sleep', 's_setprio', 's_bitcmp')):
                self.r = sum((_regs(o) for o in ops), [])
            else:
                self.w = _regs(ops[0]) if ops else []; self.r = sum((_regs(o) for o in ops[1:]), [])
                if 'saveexec' in op: self.w += [('s', 'exec')]

def is_valu(c):
    return c.split('+')[0] in ('valu', 'dpp', 'trans', 'dot', 'permlane', 'readlane', 'mfma')

class Asm:
    def __init__(self):
        self.lines = []
        self.vq = []
        self.nops_inserted = 0

    def raw(self, s):
        self.lines.append(s)

    def label(self, name):
        self.lines.append(name + ':')

    def comment(self, s):
        self.lines.append('    ; ' + s)

    def need(self, ins):
        req = 0
        dist = 0
        for prev in reversed(self.lines):
            if isinstance(prev, str):
                if prev.endswith(':') and not prev.startswith(' '):
                    pass
                continue
            if dist >= 20: break
            n = self._pair(prev, ins)
            if n > dist: req = max(req, n - dist)
            dist += prev.states
        return req

    @staticmethod
    def _pair(p, c):
        pw = set(p.w); cr = set(c.r); cw = set(c.w)
        pv = is_valu(p.cls); cv = is_valu(c.cls)
        n = 0
        vw = {x for x in pw if x[0] == 'v'}
        sw = {x for x in pw if x[0] == 's'}
        if pv:
            if vw & cr:
                if 'dpp' in c.cls: n = max(n, 2)
                if c.cls == 'permlane': n = max(n, 2)
                if c.cls == 'readlane': n = max(n, 1)
                if c.cls == 'mfma' and p.cls != 'mfma': n = max(n, 2)
                if p.cls.startswith('trans') and cv and not c.cls.startswith('trans'): n = max(n, 1)
                if p.cls.startswith('trans') and c.cls.startswith('trans'): n = max(n, 1)
            if p.cls.startswith('dot'):
                if vw & (cr | cw):
                    if c.cls.startswith('dot') and c.op == p.op:
                        body = c.text.split(';')[0]
                        ops = [o.strip() for o in body.split(None, 1)[1].split(',')]
                        ab = set(_regs(ops[1].split()[0]) + _regs(ops[2].split()[0]))
                        if vw & ab: n = max(n, 3)
                    else:
                        n = max(n, 3)
            if p.cls == 'mfma':
                if vw & (cr | cw):
                    n = max(n, 12)
                    if c.cls == 'mfma' and c.op == p.op:
                        body = c.text.split(';')[0]
                        ops = [o.strip() for o in body.split(None, 1)[1].split(',')]
                        ab = set(_regs(ops[1].split()[0]) + _regs(ops[2].split()[0]))
                        cc = set(_regs(ops[3].split()[0]))
                        if not (vw & ab) and cc == vw: n = 0
                    if '16x16' in p.op and n == 12: n = 8
            if sw:
                if sw & cr:
                    if c.cls.startswith('vmem'): n = max(n, 5)
                    elif c.cls == 'readlane': n = max(n, 4)
                    elif cv: n = max(n, 2)
                    elif c.cls == 'salu': n = max(n, 1)
                if ('s', 'exec') in sw:
                    if 'dpp' in c.cls: n = max(n, 5)
                    if c.cls in ('readlane', 'permlane', 'mfma'): n = max(n, 4)
        if p.cls == 'vmem_wstore':
            if cw & {x for x in p.r if x[0] == 'v'}:
                n = max(n, 2)
        if p.cls == 'salu':
            if ('s', 'm0') in pw and (c.cls.startswith('vmem') or c.cls == 'ds'): n = max(n, 1)
            if ('s', 'exec') in pw and 'dpp' in c.cls: n = max(n, 2)
        return n

    def __call__(self, text, tag=None):
        ins = Ins(text)
        k = self.need(ins)
        if k > 0:
            self.nops_inserted += 1
            while k > 0:
                t = min(k, 16)
                self.lines.append(Ins('s_nop %d' % (t - 1)))
                k -= t
        self.lines.append(ins)
        if ins.cls.startswith('vmem'):
            self.vq.append(tag if tag is not None else object())
        return ins

    def wait_vm(self, tag):
        if tag not in self.vq:
            return
        i = len(self.vq) - 1 - self.vq[::-1].index(tag)
        n = len(self.vq) - 1 - i
        assert n <= 63
        self('s_waitcnt vmcnt(%d)' % n)
        self.vq = self.vq[i + 1:]

    def wait_vm_all(self):
        self('s_waitcnt vmcnt(0)')
        self.vq = []

    def text(self):
        out = []
        for l in self.lines:
            out.append(l if isinstance(l, str) else '    ' + l.text)
        return '\n'.join(out) + '\n'
```

```python
import sys, argparse
sys.path.insert(0, 'gen')
from asmlib import Asm

NAME = 'concat_heads__sliding_block_cached__mha_block_cached__decode'
HEADER = open('cdna_kernels/%s.s.ref' % NAME).read().split('; Override launch')[0]

def gen(nt=True, rot=0, timing=False, mimic=True, contig=False):
    a = Asm()
    NW = 16
    kvmod = ' nt' if nt else ''
    S_BH, S_W = 2, 3
    KA, VA, KB, VB, WQA, WQB, WOA = 4, 8, 12, 16, 20, 24, 28
    WOB, XA, XB, WS, OUT, DBG = 60, 64, 68, 72, 76, 80
    S_MASK, S_SCALE, S_LOG2E, S_PLO, S_PHI = 84, 85, 86, 87, 88
    S_OFF, S_CNT, S_T0, S_T1, S_B, S_H, S_WOFF = 89, 90, 91, 92, 93, 94, 95
    S_TS = 96
    V_KV, V_W, V_J, V_G = 1, 2, 3, 4
    V_LW, V_LR, V_A0 = 5, 6, 7
    RK, RV = 8, 24
    W = 40
    ACC = 80
    Q = 88
    S = 92
    M, ML, L, AL = 96, 97, 98, 99
    T = 100
    XAr, XBr = 116, 122
    PART, PSTR = 0, 528
    ST = 8448
    QBA, QBB = 8704, 8960
    RED = 9216
    LDS_BYTES = RED + 81920

    def srd(i): return 's[%d:%d]' % (i, i + 3)
    def vq(i, n=4): return 'v[%d:%d]' % (i, i + n - 1)

    def stamp(k):
        if not timing: return
        a('s_memrealtime s[%d:%d]' % (S_TS, S_TS + 1))
        a('s_waitcnt lgkmcnt(0)')
        a('v_mov_b32 v%d, s%d' % (T + 14, S_TS))
        a('v_mov_b32 v%d, s%d' % (T + 15, S_TS + 1))
        a('v_mov_b32 v%d, 0' % (T + 13))
        a('s_lshl_b32 s%d, s%d, 10' % (S_T0, S_BH))
        a('s_lshl_b32 s%d, s%d, 6' % (S_T1, S_W))
        a('s_add_u32 s%d, s%d, s%d' % (S_T0, S_T0, S_T1))
        a('s_add_u32 s%d, s%d, 0x200000' % (S_T0, S_T0))
        a('buffer_store_dwordx2 v[%d:%d], v%d, %s, s%d offen offset:%d' % (T + 14, T + 15, T + 13, srd(WS), S_T0, k * 8))

    a('s_cmp_ge_u32 s2, 256')
    a('s_cbranch_scc1 L_end')
    a('s_load_dwordx16 s[32:47], s[0:1], 0')
    a('s_load_dwordx8 s[48:55], s[0:1], 64')
    a('s_load_dwordx2 s[56:57], s[0:1], 96')
    a('v_lshrrev_b32 v%d, 6, v0' % V_W)
    a('v_and_b32 v%d, 63, v0' % V_KV)
    a('v_readfirstlane_b32 s%d, v%d' % (S_W, V_W))
    a('v_lshlrev_b32 v%d, 4, v%d' % (V_KV, V_KV))
    a('v_and_b32 v%d, 15, v0' % V_J)
    a('v_bfe_u32 v%d, v0, 4, 2' % V_G)
    a('s_lshr_b32 s%d, s2, 5' % S_B)
    a('s_and_b32 s%d, s2, 31' % S_H)
    a('s_mov_b32 s%d, 0xffff0000' % S_MASK)
    a('s_mov_b32 s%d, 0x3db504f3' % S_SCALE)
    a('s_mov_b32 s%d, 0x3fb8aa3b' % S_LOG2E)
    a('s_mov_b32 s%d, 0x05040100' % S_PLO)
    a('s_mov_b32 s%d, 0x07060302' % S_PHI)
    a('v_mul_u32_u24 v%d, 327680, v%d' % (T, V_W))
    a('v_mul_u32_u24 v%d, 81920, v%d' % (T + 1, V_G))
    a('v_lshl_add_u32 v%d, v%d, 4, v%d' % (T, V_J, T))
    a('v_add_u32 v%d, v%d, v%d' % (V_A0, T, T + 1))
    a('v_mul_u32_u24 v%d, 80, v%d' % (T + 2, V_W))
    a('v_mul_u32_u24 v%d, 20, v%d' % (T + 3, V_G))
    a('v_add_u32 v%d, v%d, v%d' % (T + 2, T + 2, T + 3))
    a('v_mul_u32_u24 v%d, %d, v%d' % (V_LW, PSTR, V_W))
    a('v_lshl_add_u32 v%d, v%d, 5, v%d' % (V_LW, V_J, V_LW))
    a('v_lshl_add_u32 v%d, v%d, 3, v%d' % (V_LW, V_G, V_LW))
    a('v_mul_u32_u24 v%d, %d, v%d' % (V_LR, PSTR, V_J))
    a('v_lshl_add_u32 v%d, v%d, 5, v%d' % (V_LR, V_W, V_LR))
    a('v_lshl_add_u32 v%d, v%d, 3, v%d' % (V_LR, V_G, V_LR))
    if contig:
        raise NotImplementedError
    a('s_lshl_b32 s%d, s%d, 12' % (S_WOFF, S_W))
    a('s_lshl_b32 s%d, s2, 20' % S_T0)
    a('s_waitcnt lgkmcnt(0)')
    def mk_srd(d, ptr, off_sreg, nrec):
        if off_sreg is None:
            a('s_mov_b32 s%d, s%d' % (d, ptr))
            a('s_mov_b32 s%d, s%d' % (d + 1, ptr + 1))
        else:
            a('s_add_u32 s%d, s%d, s%d' % (d, ptr, off_sreg))
            a('s_addc_u32 s%d, s%d, 0' % (d + 1, ptr + 1))
        if isinstance(nrec, int):
            a('s_mov_b32 s%d, %d' % (d + 2, nrec))
        else:
            a('s_mov_b32 s%d, s%d' % (d + 2, nrec[0]))
        a('s_mov_b32 s%d, 0x00020000' % (d + 3))
    a('s_mul_i32 s%d, s%d, 1280' % (S_T1, S_B))
    mk_srd(XA, 32, S_T1, 1280)
    mk_srd(XB, 42, S_T1, 1280)
    a('s_lshl_b32 s%d, s%d, 8' % (S_T1, S_H))
    a('s_sub_u32 s%d, 5242880, s%d' % (S_CNT, S_T1))
    mk_srd(WQA, 38, S_T1, (S_CNT,))
    mk_srd(WQB, 48, S_T1, (S_CNT,))
    mk_srd(KA, 34, S_T0, 1 << 20)
    mk_srd(VA, 36, S_T0, 1 << 20)
    if timing:
        mk_srd(WS, 56, None, 0x400000)
        stamp(0)
        a('s_lshl_b32 s%d, s2, 20' % S_T0)
    a('buffer_load_dwordx4 %s, v%d, %s, 0 offen' % (vq(XAr), T + 2, srd(XA)), tag='xa0')
    a('buffer_load_dword v%d, v%d, %s, 0 offen offset:16' % (XAr + 4, T + 2, srd(XA)), tag='xa1')

    def load_wq(srdi, tagp):
        for n in range(10):
            a('s_mov_b32 s%d, %d' % (S_T1, n * 8192))
            a('buffer_load_dwordx4 %s, v%d, %s, s%d offen' % (vq(W + 4 * n), V_A0, srd(srdi), S_T1), tag=(tagp, n))
    load_wq(WQA, 'wqa')
    A_BASE = 3072 * 256
    a('s_add_u32 s%d, s%d, %d' % (S_OFF, S_WOFF, A_BASE))
    def ldK(n, srdi): a('buffer_load_dwordx4 %s, v%d, %s, s%d offen offset:%d%s' % (vq(RK + 4 * n), V_KV, srd(srdi), S_OFF, n * 1024, kvmod), tag=('k', n))
    def ldV(n, srdi): a('buffer_load_dwordx4 %s, v%d, %s, s%d offen offset:%d%s' % (vq(RV + 4 * n), V_KV, srd(srdi), S_OFF, n * 1024, kvmod), tag=('v', n))
    for n in range(4): ldK(n, KA)
    for n in range(4): ldV(n, VA)
    a('buffer_load_dwordx4 %s, v%d, %s, 0 offen' % (vq(XBr), T + 2, srd(XB)), tag='xb0')
    a('buffer_load_dword v%d, v%d, %s, 0 offen offset:16' % (XBr + 4, T + 2, srd(XB)), tag='xb1')
    mk_srd(KB, 44, S_T0, 1 << 20)
    mk_srd(VB, 46, S_T0, 1 << 20)
    a('s_mul_i32 s%d, s%d, 163840' % (S_T1, S_H))
    mk_srd(WOA, 40, S_T1, 163840)
    mk_srd(WOB, 50, S_T1, 163840)
    if not timing:
        mk_srd(WS, 56, None, 256 * 5120)
    mk_srd(OUT, 52, None, 8 * 1280 * 2)
    mk_srd(DBG, 54, None, 256)

    def reduce8_to_lds(ACC=ACC):
        for e in range(4):
            a('v_permlane32_swap_b32 v%d, v%d' % (ACC + e, ACC + 4 + e))
        for e in range(4):
            a('v_add_f32 v%d, v%d, v%d' % (ACC + e, ACC + e, ACC + 4 + e))
        for e in range(2):
            a('v_permlane16_swap_b32 v%d, v%d' % (ACC + e, ACC + 2 + e))
        for e in range(2):
            a('v_add_f32 v%d, v%d, v%d' % (ACC + e, ACC + e, ACC + 2 + e))
        a('ds_write_b64 v%d, v[%d:%d] offset:%d' % (V_LW, ACC, ACC + 1, PART))

    def rowsum(regs, op='v_add_f32'):
        for step in (8, 4, 2, 1):
            for r in regs:
                a('%s_dpp v%d, v%d, v%d row_ror:%d row_mask:0xf bank_mask:0xf' % (op, r, r, r, step))

    def qproj_partial(tagp, xr, xtag):
        a.wait_vm(xtag)
        for t in range(5):
            a.wait_vm((tagp, 2 * t + 1))
            for d in range(4):
                ra, rb = W + 8 * t + d, W + 8 * t + 4 + d
                a('v_perm_b32 v%d, v%d, v%d, s%d' % (T + 2 * d, rb, ra, S_PLO))
                a('v_perm_b32 v%d, v%d, v%d, s%d' % (T + 2 * d + 1, rb, ra, S_PHI))
            for e in range(8):
                c = '0' if t == 0 else 'v%d' % (T + 8 + e)
                a('v_dot2_f32_bf16 v%d, v%d, v%d, %s' % (T + 8 + e, T + e, xr + t, c))

    def qproj_finish(qb):
        reduce8_to_lds(T + 8)
        a('s_waitcnt lgkmcnt(0)')
        a('s_barrier')
        a('ds_read_b64 v[%d:%d], v%d offset:%d' % (T, T + 1, V_LR, PART))
        a('v_lshlrev_b32 v%d, 4, v%d' % (T + 2, V_W))
        a('v_lshl_add_u32 v%d, v%d, 2, v%d' % (T + 2, V_G, T + 2))
        a('s_waitcnt lgkmcnt(0)')
        rowsum([T, T + 1])
        a('v_cvt_pk_bf16_f32 v%d, v%d, v%d' % (T, T, T + 1))
        a('ds_write_b32 v%d, v%d offset:%d' % (T + 2, T, qb))
        a('s_waitcnt lgkmcnt(0)')
        a('s_barrier')

    def load_q(qb):
        a('v_lshlrev_b32 v%d, 4, v%d' % (T, V_J))
        a('ds_read_b128 %s, v%d offset:%d' % (vq(Q), T, qb))
        a('s_waitcnt lgkmcnt(0)')

    def init_state():
        a('v_mov_b32 v%d, 0xff800000' % M)
        a('v_mov_b32 v%d, 0xff800000' % ML)
        a('v_mov_b32 v%d, 0' % L)
        for e in range(8):
            a('v_mov_b32 v%d, 0' % (ACC + e))

    def round_bf16(regs):
        a('v_cvt_pk_bf16_f32 v%d, v%d, v%d' % (T, regs[0], regs[1]))
        a('v_cvt_pk_bf16_f32 v%d, v%d, v%d' % (T + 1, regs[2], regs[3]))
        a('v_lshlrev_b32 v%d, 16, v%d' % (regs[0], T))
        a('v_and_b32 v%d, s%d, v%d' % (regs[1], S_MASK, T))
        a('v_lshlrev_b32 v%d, 16, v%d' % (regs[2], T + 1))
        a('v_and_b32 v%d, s%d, v%d' % (regs[3], S_MASK, T + 1))

    def chunk(nextK, nextV):
        for n in range(4):
            a.wait_vm(('k', n))
            for d in range(4):
                c = '0' if d == 0 else 'v%d' % (S + n)
                a('v_dot2_f32_bf16 v%d, v%d, v%d, %s' % (S + n, RK + 4 * n + d, Q + d, c))
            if nextK is not None: ldK(n, nextK)
        sr = [S, S + 1, S + 2, S + 3]
        rowsum(sr)
        if mimic:
            round_bf16(sr)
        for r in sr:
            a('v_mul_f32 v%d, s%d, v%d' % (r, S_SCALE, r))
        if mimic:
            round_bf16(sr)
        a('v_max3_f32 v%d, v%d, v%d, v%d' % (M, sr[0], sr[1], M))
        a('v_max3_f32 v%d, v%d, v%d, v%d' % (M, sr[2], sr[3], M))
        a('v_mul_f32 v%d, s%d, v%d' % (T + 2, S_LOG2E, M))
        a('v_sub_f32 v%d, v%d, v%d' % (AL, ML, T + 2))
        a('v_exp_f32 v%d, v%d' % (AL, AL))
        for r in sr:
            a('v_fma_f32 v%d, v%d, s%d, -v%d' % (r, r, S_LOG2E, T + 2))
        a('v_mov_b32 v%d, v%d' % (ML, T + 2))
        for r in sr:
            a('v_exp_f32 v%d, v%d' % (r, r))
        for e in range(8):
            a('v_mul_f32 v%d, v%d, v%d' % (ACC + e, AL, ACC + e))
        a('v_fma_f32 v%d, v%d, v%d, v%d' % (L, L, AL, sr[0]))
        a('v_add_f32 v%d, v%d, v%d' % (T + 3, sr[1], sr[2]))
        a('v_add_f32 v%d, v%d, v%d' % (L, L, sr[3]))
        a('v_add_f32 v%d, v%d, v%d' % (L, L, T + 3))
        for n in range(4):
            a.wait_vm(('v', n))
            for d in range(4):
                a('v_lshlrev_b32 v%d, 16, v%d' % (T + 4 + 2 * d, RV + 4 * n + d))
                a('v_and_b32 v%d, s%d, v%d' % (T + 5 + 2 * d, S_MASK, RV + 4 * n + d))
            if nextV is not None: ldV(n, nextV)
            for e in range(8):
                a('v_fmac_f32 v%d, v%d, v%d' % (ACC + e, sr[n], T + 4 + e))

    def load_wo(srdi, tagp):
        a('v_mul_u32_u24 v%d, 10240, v%d' % (T + 0, V_W))
        a('v_mul_u32_u24 v%d, 2560, v%d' % (T + 1, V_G))
        a('v_lshl_add_u32 v%d, v%d, 4, v%d' % (T + 0, V_J, T + 0))
        a('v_add_u32 v%d, v%d, v%d' % (T + 0, T + 0, T + 1))
        for cb in range(5):
            for r in range(2):
                a('buffer_load_dwordx4 %s, v%d, %s, 0 offen offset:%d' % (vq(W + 8 * cb + 4 * r), T + 0, srd(srdi), r * 1280 + cb * 256), tag=(tagp, cb, r))

    def pair_wo(tagp):
        a.wait_vm((tagp, 4, 1))
        for cb in range(5):
            for d in range(4):
                ra, rb = W + 8 * cb + d, W + 8 * cb + 4 + d
                a('v_perm_b32 v%d, v%d, v%d, s%d' % (T + d, rb, ra, S_PLO))
                a('v_perm_b32 v%d, v%d, v%d, s%d' % (rb, rb, ra, S_PHI))
            for d in range(4):
                a('v_mov_b32 v%d, v%d' % (W + 8 * cb + d, T + d))

    def allreduce_groups(r, tmp, op):
        a('v_mov_b32 v%d, v%d' % (tmp, r))
        a('v_permlane32_swap_b32 v%d, v%d' % (r, tmp))
        a('%s v%d, v%d, v%d' % (op, r, r, tmp))
        a('v_mov_b32 v%d, v%d' % (tmp, r))
        a('v_permlane16_swap_b32 v%d, v%d' % (r, tmp))
        a('%s v%d, v%d, v%d' % (op, r, r, tmp))

    def epilogue(side):
        a('v_mov_b32 v%d, v%d' % (T + 4, ML))
        allreduce_groups(T + 4, T + 5, 'v_max_f32')
        a('v_sub_f32 v%d, v%d, v%d' % (AL, ML, T + 4))
        a('v_exp_f32 v%d, v%d' % (AL, AL))
        a('v_lshlrev_b32 v%d, 3, v%d' % (T + 6, V_W))
        for e in range(8):
            a('v_mul_f32 v%d, v%d, v%d' % (ACC + e, AL, ACC + e))
        a('v_mul_f32 v%d, v%d, v%d' % (T + 5, AL, L))
        allreduce_groups(T + 5, T + 7, 'v_add_f32')
        reduce8_to_lds()
        a('ds_write_b64 v%d, v[%d:%d] offset:%d' % (T + 6, T + 4, T + 5, ST))
        a('v_lshlrev_b32 v%d, 3, v%d' % (T + 6, V_J))
        a('s_waitcnt lgkmcnt(0)')
        a('s_barrier')
        a('ds_read_b64 v[%d:%d], v%d offset:%d' % (T, T + 1, T + 6, ST))
        a('ds_read_b64 v[%d:%d], v%d offset:%d' % (T + 2, T + 3, V_LR, PART))
        a('s_waitcnt lgkmcnt(1)')
        a('v_mov_b32 v%d, v%d' % (T + 4, T))
        rowsum([T + 4], 'v_max_f32')
        a('v_sub_f32 v%d, v%d, v%d' % (T, T, T + 4))
        a('v_exp_f32 v%d, v%d' % (T, T))
        a('s_waitcnt lgkmcnt(0)')
        a('v_mul_f32 v%d, v%d, v%d' % (T + 1, T, T + 1))
        a('v_mul_f32 v%d, v%d, v%d' % (T + 2, T, T + 2))
        a('v_mul_f32 v%d, v%d, v%d' % (T + 3, T, T + 3))
        rowsum([T + 1, T + 2, T + 3])
        a('v_rcp_f32 v%d, v%d' % (T + 1, T + 1))
        a('v_mul_u32_u24 v%d, 2560, v%d' % (T + 6, V_W))
        a('v_lshl_add_u32 v%d, v%d, 5, v%d' % (T + 6, V_J, T + 6))
        a('v_lshl_add_u32 v%d, v%d, 3, v%d' % (T + 6, V_G, T + 6))
        a('v_mul_f32 v%d, v%d, v%d' % (T + 2, T + 2, T + 1))
        a('v_mul_f32 v%d, v%d, v%d' % (T + 3, T + 3, T + 1))
        a('v_cvt_pk_bf16_f32 v%d, v%d, v%d' % (T, T + 2, T + 3))
        for i in range(40):
            a('v_dot2_f32_bf16 v%d, v%d, v%d, 0' % (W + i, W + i, T))
        def el(cb, e): return W + 8 * cb + (e >> 1) + 4 * (e & 1)
        for cb in range(5):
            for e in range(4):
                a('v_permlane32_swap_b32 v%d, v%d' % (el(cb, e), el(cb, e + 4)))
        for cb in range(5):
            for e in range(4):
                a('v_add_f32 v%d, v%d, v%d' % (el(cb, e), el(cb, e), el(cb, e + 4)))
        for cb in range(5):
            for e in range(2):
                a('v_permlane16_swap_b32 v%d, v%d' % (el(cb, e), el(cb, e + 2)))
        for cb in range(5):
            a('v_add_f32 v%d, v%d, v%d' % (W + 8 * cb, el(cb, 0), el(cb, 2)))
            a('v_add_f32 v%d, v%d, v%d' % (W + 8 * cb + 1, el(cb, 1), el(cb, 3)))
        for cb in range(5):
            a('ds_write_b64 v%d, v[%d:%d] offset:%d' % (T + 6, W + 8 * cb, W + 8 * cb + 1, RED + cb * 512))
        a('s_waitcnt lgkmcnt(0)')
        a('s_barrier')
        lbl = 'L_nored_%d' % side
        a('s_cmp_ge_u32 s%d, 5' % S_W)
        a('s_cbranch_scc1 %s' % lbl)
        a('v_lshlrev_b32 v%d, 3, v0' % (T + 6))
        for p in range(16):
            a('ds_read_b64 v[%d:%d], v%d offset:%d' % (W + 2 * p, W + 2 * p + 1, T + 6, RED + p * 2560))
        a('s_mul_i32 s%d, s%d, 5120' % (S_T0, S_BH))
        a('s_add_u32 s%d, s%d, %d' % (S_T0, S_T0, side * 2560))
        a('s_waitcnt lgkmcnt(0)')
        for st in (8, 4, 2, 1):
            for p in range(st):
                a('v_pk_add_f32 v[%d:%d], v[%d:%d], v[%d:%d]' % (W + 2 * p, W + 2 * p + 1, W + 2 * p, W + 2 * p + 1, W + 2 * (p + st), W + 2 * (p + st) + 1))
        a('buffer_store_dwordx2 v[%d:%d], v%d, %s, s%d offen sc1' % (W, W + 1, T + 6, srd(WS), S_T0), tag=('st', side))
        a.vq.remove(('st', side))
        a.label(lbl)

    qproj_partial('wqa', XAr, 'xa1')
    load_wq(WQB, 'wqb')
    qproj_finish(QBA)
    load_q(QBA)
    init_state()
    stamp(1)
    a('s_add_u32 s%d, s%d, 65536' % (S_OFF, S_OFF))
    chunk(KA, VA)
    a('s_add_u32 s%d, s%d, 65536' % (S_OFF, S_OFF))
    chunk(KA, VA)
    qproj_partial('wqb', XBr, 'xb1')
    load_wo(WOA, 'woa')
    qproj_finish(QBB)
    a('s_add_u32 s%d, s%d, 65536' % (S_OFF, S_OFF))
    chunk(KA, VA)
    if rot:
        a('s_mul_i32 s%d, s2, %d' % (S_CNT, rot))
        a('s_and_b32 s%d, s%d, 15' % (S_CNT, S_CNT))
        a('s_lshl_b32 s%d, s%d, 16' % (S_OFF, S_CNT))
        a('s_add_u32 s%d, s%d, s%d' % (S_OFF, S_OFF, S_WOFF))
    else:
        a('s_mov_b32 s%d, s%d' % (S_OFF, S_WOFF))
    chunk(KB, VB)
    pair_wo('woa')
    stamp(2)
    epilogue(0)
    stamp(3)
    load_wo(WOB, 'wob')
    load_q(QBB)
    init_state()
    def adv():
        a('s_add_u32 s%d, s%d, 65536' % (S_OFF, S_OFF))
        if rot:
            a('s_and_b32 s%d, s%d, 0xfffff' % (S_OFF, S_OFF))
    adv()
    chunk(KB, VB)
    pair_wo('wob')
    assert a.vq == [('k', i) for i in range(4)] + [('v', i) for i in range(4)], a.vq
    a('s_mov_b32 s%d, 14' % S_CNT)
    a('s_nop 4')
    a.label('L_loop')
    adv()
    chunk(KB, VB)
    assert a.vq == [('k', i) for i in range(4)] + [('v', i) for i in range(4)], a.vq
    a('s_sub_u32 s%d, s%d, 1' % (S_CNT, S_CNT))
    a('s_cmp_lg_u32 s%d, 0' % S_CNT)
    a('s_nop 2')
    a('s_cbranch_scc1 L_loop')
    chunk(None, None)
    stamp(4)
    epilogue(1)
    a.wait_vm_all()
    a('s_barrier')
    a('s_cmp_lg_u32 s%d, 0' % S_W)
    a('s_cbranch_scc1 L_noatom')
    a('s_lshl_b32 s%d, s%d, 4' % (S_T0, S_B))
    a('v_mov_b32 v%d, 0' % (T + 1))
    a('v_mov_b32 v%d, 1' % T)
    a('s_mov_b64 exec, 1')
    a('buffer_atomic_add v%d, v%d, %s, s%d offen sc0' % (T, T + 1, srd(DBG), S_T0))
    a('s_waitcnt vmcnt(0)')
    a('ds_write_b32 v%d, v%d offset:%d' % (T + 1, T, ST))
    a('s_waitcnt lgkmcnt(0)')
    a('s_mov_b64 exec, -1')
    a.label('L_noatom')
    a.vq = []
    a('s_barrier')
    a('v_mov_b32 v%d, 0' % (T + 1))
    a('ds_read_b32 v%d, v%d offset:%d' % (T, T + 1, ST))
    a('s_waitcnt lgkmcnt(0)')
    a('v_readfirstlane_b32 s%d, v%d' % (S_T0, T))
    stamp(5)
    if timing:
        a('v_readfirstlane_b32 s%d, v%d' % (S_T0, T))
    a('s_cmp_lg_u32 s%d, 31' % S_T0)
    a('s_cbranch_scc1 L_end')
    a('s_lshl_b32 s%d, s%d, 5' % (S_T0, S_B))
    a('s_lshl_b32 s%d, s%d, 1' % (S_T1, S_W))
    a('s_add_u32 s%d, s%d, s%d' % (S_T0, S_T0, S_T1))
    a('s_mul_i32 s%d, s%d, 5120' % (S_T0, S_T0))
    for i in range(10):
        if i in (4, 8):
            a('s_add_u32 s%d, s%d, 4096' % (S_T0, S_T0))
        a('buffer_load_dwordx4 %s, v%d, %s, s%d offen offset:%d sc1' % (vq(W + 4 * i), V_KV, srd(WS), S_T0, (i % 4) * 1024), tag=('f', i))
    a('v_mul_u32_u24 v%d, 5120, v%d' % (T + 6, V_W))
    a('v_add_u32 v%d, v%d, v%d' % (T + 6, T + 6, V_KV))
    for i in range(5):
        a.wait_vm(('f', i + 5))
        for hh in range(2):
            r0 = W + 4 * i + 2 * hh; r1 = W + 4 * (i + 5) + 2 * hh
            a('v_pk_add_f32 v[%d:%d], v[%d:%d], v[%d:%d]' % (r0, r0 + 1, r0, r0 + 1, r1, r1 + 1))
        a('ds_write_b128 v%d, %s offset:%d' % (T + 6, vq(W + 4 * i), RED + i * 1024))
    a('s_waitcnt lgkmcnt(0)')
    a('s_barrier')
    a('s_cmp_ge_u32 s%d, 10' % S_W)
    a('s_cbranch_scc1 L_end')
    a('v_lshlrev_b32 v%d, 3, v0' % (T + 6))
    a('v_add_u32 v%d, %d, v%d' % (T + 7, 8 * 5120, T + 6))
    for p in range(16):
        a('ds_read_b64 v[%d:%d], v%d offset:%d' % (W + 2 * p, W + 2 * p + 1, T + 6 + (p // 8), RED + (p % 8) * 5120))
    a('s_mul_i32 s%d, s%d, 2560' % (S_T0, S_B))
    a('v_lshlrev_b32 v%d, 2, v0' % (T + 6))
    a('s_waitcnt lgkmcnt(0)')
    for st in (8, 4, 2, 1):
        for p in range(st):
            a('v_pk_add_f32 v[%d:%d], v[%d:%d], v[%d:%d]' % (W + 2 * p, W + 2 * p + 1, W + 2 * p, W + 2 * p + 1, W + 2 * (p + st), W + 2 * (p + st) + 1))
    a('v_cvt_pk_bf16_f32 v%d, v%d, v%d' % (W, W, W + 1))
    a('buffer_store_dword v%d, v%d, %s, s%d offen' % (W, T + 6, srd(OUT), S_T0))
    stamp(6)
    a.label('L_end')
    a('s_endpgm')

    out = HEADER
    out += '; @launch grid=(256,1,1) block=(1024,1,1) lds=%d\n' % LDS_BYTES
    out += '.amdgcn_target "amdgcn-amd-amdhsa--gfx950"\n.text\n.globl %s_kernel\n.p2align 8\n.type %s_kernel,@function\n%s_kernel:\n' % (NAME, NAME, NAME)
    out += a.text()
    out += """.section .rodata,"a"
.p2align 6
.amdhsa_kernel %s_kernel
  .amdhsa_next_free_vgpr 128
  .amdhsa_next_free_sgpr 102
  .amdhsa_accum_offset 128
  .amdhsa_group_segment_fixed_size 0
  .amdhsa_kernarg_size 104
  .amdhsa_user_sgpr_count 2
  .amdhsa_user_sgpr_kernarg_segment_ptr 1
  .amdhsa_system_sgpr_workgroup_id_x 1
.end_amdhsa_kernel
""" % NAME
    return out

if __name__ == '__main__':
    ap = argparse.ArgumentParser()
    ap.add_argument('-o', default='cdna_kernels/%s.s' % NAME)
    ap.add_argument('--nt', type=int, default=1)
    ap.add_argument('--rot', type=int, default=0)
    ap.add_argument('--timing', type=int, default=0)
    ap.add_argument('--mimic', type=int, default=1)
    args = ap.parse_args()
    open(args.o, 'w').write(gen(nt=args.nt, rot=args.rot, timing=args.timing, mimic=args.mimic))
```

```python
import sys, argparse
sys.path.insert(0, 'gen')
from asmlib import Asm

NAME = 'concat_heads__sliding_block_cached__mha_block_cached__decode'
HEADER = open('cdna_kernels/%s.s.ref' % NAME).read().split('; Override launch')[0]

def gen(timing=False, mimic=True, pbar=1, loopbar=1, wrot=1, spin_limit=1 << 20):
    a = Asm()
    kvmod = ' nt'
    S_BH, S_W = 2, 3
    KN, VN, KB, VB, WQA, WQB, WOA = 4, 8, 12, 16, 20, 24, 28
    WOB, XA, XB, WS, OUT, DBG = 60, 64, 68, 72, 76, 80
    S_MASK, S_SCALE, S_LOG2E, S_PLO, S_PHI = 84, 85, 86, 87, 88
    S_OFF, S_IT, S_T0, S_T1, S_B, S_H, S_WOFF = 89, 90, 91, 92, 93, 94, 95
    S_TS = 96
    S_2560, S_SPIN = 98, 99
    V_KV, V_W, V_J, V_G, V_LW, V_LR, V_WA = 1, 2, 3, 4, 5, 6, 7
    RK, RV = 8, 24
    ACC, Q, S = 40, 48, 52
    M, ML, L, AL = 56, 57, 58, 59
    T = 60
    OA = 76
    V_WO, V_CNT, V_ST = 78, 79, 80
    V_X = 81
    WA, WB = 88, 168
    XAr = WB + 70
    XBr = WA + 70
    PART, PSTR = 0, 544
    ST = 4352
    QBA, QBB = 4608, 4864
    RED = 5120
    LDS_BYTES = 90112
    EMPTY = 0xffffffff

    def srd(i): return 's[%d:%d]' % (i, i + 3)
    def vq(i, n=4): return 'v[%d:%d]' % (i, i + n - 1)

    def stamp(k):
        if not timing: return
        a('s_memrealtime s[%d:%d]' % (S_TS, S_TS + 1))
        a('s_waitcnt lgkmcnt(0)')
        a('v_writelane_b32 v%d, s%d, %d' % (V_ST, S_TS, k))
    def stamp_it():
        if not timing: return
        a('s_memrealtime s[%d:%d]' % (S_TS, S_TS + 1))
        a('s_add_u32 m0, s%d, 8' % S_IT)
        a('s_waitcnt lgkmcnt(0)')
        a('v_writelane_b32 v%d, s%d, m0' % (V_ST, S_TS))
    def stamp_flush():
        if not timing: return
        a('s_lshl_b32 s%d, s%d, 11' % (S_T0, S_BH))
        a('s_lshl_b32 s%d, s%d, 8' % (S_T1, S_W))
        a('s_add_u32 s%d, s%d, s%d' % (S_T0, S_T0, S_T1))
        a('s_add_u32 s%d, s%d, 0x200000' % (S_T0, S_T0))
        a('v_lshrrev_b32 v%d, 2, v%d' % (T, V_KV))
        a('buffer_store_dword v%d, v%d, %s, s%d offen' % (V_ST, T, srd(WS), S_T0))

    a('s_cmp_ge_u32 s2, 256')
    a('s_cbranch_scc1 L_end')
    a('s_load_dwordx16 s[32:47], s[0:1], 0')
    a('s_load_dwordx8 s[48:55], s[0:1], 64')
    a('s_load_dwordx2 s[56:57], s[0:1], 96')
    if timing:
        a('v_mov_b32 v%d, -1' % V_ST)
        stamp(0)
    a('v_lshrrev_b32 v%d, 6, v0' % V_W)
    a('v_and_b32 v%d, 63, v0' % V_KV)
    a('s_lshr_b32 s%d, s2, 5' % S_B)
    a('s_and_b32 s%d, s2, 31' % S_H)
    if wrot:
        a('v_add_u32 v%d, s%d, v%d' % (V_W, S_B, V_W))
        a('v_and_b32 v%d, 7, v%d' % (V_W, V_W))
        a('v_lshl_add_u32 v0, v%d, 6, v%d' % (V_W, V_KV))
    a('v_readfirstlane_b32 s%d, v%d' % (S_W, V_W))
    a('v_lshlrev_b32 v%d, 4, v%d' % (V_KV, V_KV))
    a('v_and_b32 v%d, 15, v0' % V_J)
    a('v_bfe_u32 v%d, v0, 4, 2' % V_G)
    a('s_mov_b32 s%d, 0xffff0000' % S_MASK)
    a('s_mov_b32 s%d, 0x3db504f3' % S_SCALE)
    a('s_mov_b32 s%d, 0x3fb8aa3b' % S_LOG2E)
    a('s_mov_b32 s%d, 0x05040100' % S_PLO)
    a('s_mov_b32 s%d, 0x07060302' % S_PHI)
    a('s_mov_b32 s%d, 2560' % S_2560)
    a('v_mul_u32_u24 v%d, 655360, v%d' % (T, V_W))
    a('v_mul_u32_u24 v%d, 163840, v%d' % (T + 1, V_G))
    a('v_lshl_add_u32 v%d, v%d, 4, v%d' % (T, V_J, T))
    a('v_add_u32 v%d, v%d, v%d' % (V_WA, T, T + 1))
    a('v_mul_u32_u24 v%d, 160, v%d' % (V_X, V_W))
    a('v_mul_u32_u24 v%d, 40, v%d' % (T + 3, V_G))
    a('v_add_u32 v%d, v%d, v%d' % (V_X, V_X, T + 3))
    a('v_mul_u32_u24 v%d, 20480, v%d' % (V_WO, V_W))
    a('v_mul_u32_u24 v%d, 5120, v%d' % (T + 1, V_G))
    a('v_lshl_add_u32 v%d, v%d, 4, v%d' % (V_WO, V_J, V_WO))
    a('v_add_u32 v%d, v%d, v%d' % (V_WO, V_WO, T + 1))
    a('v_mul_u32_u24 v%d, %d, v%d' % (V_LW, PSTR, V_W))
    a('v_lshl_add_u32 v%d, v%d, 5, v%d' % (V_LW, V_J, V_LW))
    a('v_lshl_add_u32 v%d, v%d, 3, v%d' % (V_LW, V_G, V_LW))
    a('v_and_b32 v%d, 7, v%d' % (T, V_J))
    a('v_mul_u32_u24 v%d, %d, v%d' % (V_LR, PSTR, T))
    a('v_lshl_add_u32 v%d, v%d, 6, v%d' % (V_LR, V_W, V_LR))
    a('v_lshl_add_u32 v%d, v%d, 4, v%d' % (V_LR, V_G, V_LR))
    a('v_and_b32 v%d, 8, v%d' % (T, V_J))
    a('v_add_u32 v%d, v%d, v%d' % (V_LR, V_LR, T))
    a('s_lshl_b32 s%d, s%d, 12' % (S_WOFF, S_W))
    a('s_lshl_b32 s%d, s2, 20' % S_T0)
    a('s_waitcnt lgkmcnt(0)')
    def mk_srd(d, ptr, off_sreg, nrec):
        if off_sreg is None:
            a('s_mov_b32 s%d, s%d' % (d, ptr))
            a('s_mov_b32 s%d, s%d' % (d + 1, ptr + 1))
        else:
            a('s_add_u32 s%d, s%d, s%d' % (d, ptr, off_sreg))
            a('s_addc_u32 s%d, s%d, 0' % (d + 1, ptr + 1))
        if isinstance(nrec, int):
            a('s_mov_b32 s%d, %d' % (d + 2, nrec))
        else:
            a('s_mov_b32 s%d, s%d' % (d + 2, nrec[0]))
        a('s_mov_b32 s%d, 0x00020000' % (d + 3))
    a('s_mul_i32 s%d, s%d, 1280' % (S_T1, S_B))
    mk_srd(XA, 32, S_T1, 1280)
    mk_srd(XB, 42, S_T1, 1280)
    a('s_lshl_b32 s%d, s%d, 8' % (S_T1, S_H))
    a('s_sub_u32 s%d, 5242880, s%d' % (S_IT, S_T1))
    mk_srd(WQA, 38, S_T1, (S_IT,))
    def load_x(xr, srdi, tag):
        a('buffer_load_dwordx4 %s, v%d, %s, 0 offen' % (vq(xr), V_X, srd(srdi)))
        a('buffer_load_dwordx4 %s, v%d, %s, 0 offen offset:16' % (vq(xr + 4), V_X, srd(srdi)))
        a('buffer_load_dwordx2 %s, v%d, %s, 0 offen offset:32' % (vq(xr + 8, 2), V_X, srd(srdi)), tag=tag)
    load_x(XAr, XA, 'xa')
    def load_wq(base, srdi, tagp, lo, hi):
        for n in range(lo, hi):
            a('s_mov_b32 s%d, %d' % (S_TS, n * 8192))
            a('buffer_load_dwordx4 %s, v%d, %s, s%d offen' % (vq(base + 4 * n), V_WA, srd(srdi), S_TS), tag=(tagp, n))
    load_wq(WA, WQA, 'wqa', 0, 20)
    mk_srd(WQB, 48, S_T1, (S_IT,))
    mk_srd(KN, 34, S_T0, 1 << 20)
    mk_srd(VN, 36, S_T0, 1 << 20)
    A_BASE = 3072 * 256
    a('s_add_u32 s%d, s%d, %d' % (S_OFF, S_WOFF, A_BASE))
    if pbar:
        a('s_barrier')
    def ldK(n): a('buffer_load_dwordx4 %s, v%d, %s, s%d offen offset:%d%s' % (vq(RK + 4 * n), V_KV, srd(KN), S_OFF, n * 1024, kvmod), tag=('k', n))
    def ldV(n): a('buffer_load_dwordx4 %s, v%d, %s, s%d offen offset:%d%s' % (vq(RV + 4 * n), V_KV, srd(VN), S_OFF, n * 1024, kvmod), tag=('v', n))
    for n in range(4): ldK(n)
    for n in range(4): ldV(n)
    mk_srd(KB, 44, S_T0, 1 << 20)
    mk_srd(VB, 46, S_T0, 1 << 20)
    a('s_mul_i32 s%d, s%d, 163840' % (S_T1, S_H))
    mk_srd(WOA, 40, S_T1, 163840)
    mk_srd(WOB, 50, S_T1, 163840)
    mk_srd(WS, 56, None, 0x400000 if timing else 256 * 5120)
    mk_srd(OUT, 52, None, 8 * 1280 * 2)
    mk_srd(DBG, 54, None, 256)
    a('s_cmp_ge_u32 s%d, 5' % S_W)
    a('s_cbranch_scc1 L_noinit')
    for i in range(4):
        a('v_mov_b32 v%d, -1' % (T + i))
    a('s_mul_i32 s%d, s%d, 5120' % (S_T0, S_BH))
    a('s_lshl_b32 s%d, s%d, 10' % (S_T1, S_W))
    a('s_add_u32 s%d, s%d, s%d' % (S_T0, S_T0, S_T1))
    a('buffer_store_dwordx4 %s, v%d, %s, s%d offen sc1' % (vq(T), V_KV, srd(WS), S_T0), tag='init')
    a.vq.remove('init')
    a('s_nop 1')
    a.label('L_noinit')

    def reduce8_to_lds(acc):
        for e in range(4):
            a('v_permlane32_swap_b32 v%d, v%d' % (acc + e, acc + 4 + e))
        for e in range(4):
            a('v_add_f32 v%d, v%d, v%d' % (acc + e, acc + e, acc + 4 + e))
        for e in range(2):
            a('v_permlane16_swap_b32 v%d, v%d' % (acc + e, acc + 2 + e))
        for e in range(2):
            a('v_add_f32 v%d, v%d, v%d' % (acc + e, acc + e, acc + 2 + e))
        a('ds_write_b64 v%d, v[%d:%d] offset:%d' % (V_LW, acc, acc + 1, PART))

    def rowsum(regs, op='v_add_f32'):
        for step in (8, 4, 2, 1):
            for r in regs:
                a('%s_dpp v%d, v%d, v%d row_ror:%d row_mask:0xf bank_mask:0xf' % (op, r, r, r, step))
    def sum8(regs, op='v_add_f32'):
        for m in ('quad_perm:[1,0,3,2]', 'quad_perm:[2,3,0,1]', 'row_half_mirror'):
            for r in regs:
                a('%s_dpp v%d, v%d, v%d %s row_mask:0xf bank_mask:0xf' % (op, r, r, r, m))

    def qproj_partial(base, tagp, xr):
        for t in range(10):
            if tagp: a.wait_vm((tagp, 2 * t + 1))
            for d in range(4):
                ra, rb = base + 8 * t + d, base + 8 * t + 4 + d
                a('v_perm_b32 v%d, v%d, v%d, s%d' % (T + 2 * d, rb, ra, S_PLO))
                a('v_perm_b32 v%d, v%d, v%d, s%d' % (T + 2 * d + 1, rb, ra, S_PHI))
            for e in range(8):
                c = '0' if t == 0 else 'v%d' % (T + 8 + e)
                a('v_dot2_f32_bf16 v%d, v%d, v%d, %s' % (T + 8 + e, T + e, xr + t, c))

    def qproj_finish(qb):
        reduce8_to_lds(T + 8)
        a('s_waitcnt lgkmcnt(0)')
        a('s_barrier')
        a('ds_read_b64 v[%d:%d], v%d offset:%d' % (T, T + 1, V_LR, PART))
        a('v_lshlrev_b32 v%d, 5, v%d' % (T + 2, V_W))
        a('v_lshl_add_u32 v%d, v%d, 3, v%d' % (T + 2, V_G, T + 2))
        a('v_lshrrev_b32 v%d, 3, v%d' % (T + 3, V_J))
        a('v_lshl_add_u32 v%d, v%d, 2, v%d' % (T + 2, T + 3, T + 2))
        a('s_waitcnt lgkmcnt(0)')
        sum8([T, T + 1])
        a('v_cvt_pk_bf16_f32 v%d, v%d, v%d' % (T, T, T + 1))
        a('ds_write_b32 v%d, v%d offset:%d' % (T + 2, T, qb))
        a('s_waitcnt lgkmcnt(0)')
        a('s_barrier')

    def load_q(qb):
        a('v_lshlrev_b32 v%d, 4, v%d' % (T, V_J))
        a('ds_read_b128 %s, v%d offset:%d' % (vq(Q), T, qb))
        a('s_waitcnt lgkmcnt(0)')

    def init_state():
        a('v_mov_b32 v%d, 0xff800000' % M)
        a('v_mov_b32 v%d, 0xff800000' % ML)
        a('v_mov_b32 v%d, 0' % L)
        for e in range(8):
            a('v_mov_b32 v%d, 0' % (ACC + e))

    def round_bf16(regs):
        a('v_cvt_pk_bf16_f32 v%d, v%d, v%d' % (T, regs[0], regs[1]))
        a('v_cvt_pk_bf16_f32 v%d, v%d, v%d' % (T + 1, regs[2], regs[3]))
        a('v_lshlrev_b32 v%d, 16, v%d' % (regs[0], T))
        a('v_and_b32 v%d, s%d, v%d' % (regs[1], S_MASK, T))
        a('v_lshlrev_b32 v%d, 16, v%d' % (regs[2], T + 1))
        a('v_and_b32 v%d, s%d, v%d' % (regs[3], S_MASK, T + 1))

    def chunk():
        for n in range(4):
            a.wait_vm(('k', n))
            for d in range(4):
                c = '0' if d == 0 else 'v%d' % (S + n)
                a('v_dot2_f32_bf16 v%d, v%d, v%d, %s' % (S + n, RK + 4 * n + d, Q + d, c))
            ldK(n)
        sr = [S, S + 1, S + 2, S + 3]
        rowsum(sr)
        if mimic: round_bf16(sr)
        for r in sr:
            a('v_mul_f32 v%d, s%d, v%d' % (r, S_SCALE, r))
        if mimic: round_bf16(sr)
        a('v_max3_f32 v%d, v%d, v%d, v%d' % (M, sr[0], sr[1], M))
        a('v_max3_f32 v%d, v%d, v%d, v%d' % (M, sr[2], sr[3], M))
        a('v_mul_f32 v%d, s%d, v%d' % (T + 2, S_LOG2E, M))
        a('v_sub_f32 v%d, v%d, v%d' % (AL, ML, T + 2))
        a('v_exp_f32 v%d, v%d' % (AL, AL))
        for r in sr:
            a('v_fma_f32 v%d, v%d, s%d, -v%d' % (r, r, S_LOG2E, T + 2))
        a('v_mov_b32 v%d, v%d' % (ML, T + 2))
        for r in sr:
            a('v_exp_f32 v%d, v%d' % (r, r))
        for e in range(0, 8, 2):
            a('v_pk_mul_f32 v[%d:%d], v[%d:%d], v[%d:%d] op_sel:[0,1] op_sel_hi:[1,1]' % (ACC + e, ACC + e + 1, ACC + e, ACC + e + 1, AL - 1, AL))
        a('v_fma_f32 v%d, v%d, v%d, v%d' % (L, L, AL, sr[0]))
        a('v_add_f32 v%d, v%d, v%d' % (T + 3, sr[1], sr[2]))
        a('v_add_f32 v%d, v%d, v%d' % (L, L, sr[3]))
        a('v_add_f32 v%d, v%d, v%d' % (L, L, T + 3))
        for n in range(4):
            a.wait_vm(('v', n))
            for d in range(4):
                a('v_lshlrev_b32 v%d, 16, v%d' % (T + 4 + 2 * d, RV + 4 * n + d))
                a('v_and_b32 v%d, s%d, v%d' % (T + 5 + 2 * d, S_MASK, RV + 4 * n + d))
            ldV(n)
            pb = S + (n & ~1); sel = n & 1
            for e in range(0, 8, 2):
                a('v_pk_fma_f32 v[%d:%d], v[%d:%d], v[%d:%d], v[%d:%d] op_sel:[0,%d,0] op_sel_hi:[1,%d,1]' % (
                    ACC + e, ACC + e + 1, T + 4 + e, T + 5 + e, pb, pb + 1, ACC + e, ACC + e + 1, sel, sel))

    def load_wo(base, srdi, cb):
        for r in range(4):
            so = '0' if r < 2 else 's%d' % S_2560
            a('buffer_load_dwordx4 %s, v%d, %s, %s offen offset:%d' % (vq(base + 16 * cb + 4 * r), V_WO, srd(srdi), so, (r & 1) * 1280 + cb * 256))

    def pair_wo(base):
        for cb in range(5):
            for pr in range(2):
                b0 = base + 16 * cb + 8 * pr
                for d in range(4):
                    ra, rb = b0 + d, b0 + 4 + d
                    a('v_perm_b32 v%d, v%d, v%d, s%d' % (T + d, rb, ra, S_PLO))
                    a('v_perm_b32 v%d, v%d, v%d, s%d' % (rb, rb, ra, S_PHI))
                for d in range(4):
                    a('v_mov_b32 v%d, v%d' % (b0 + d, T + d))

    def allreduce_groups(r, tmp, op):
        a('v_mov_b32 v%d, v%d' % (tmp, r))
        a('v_permlane32_swap_b32 v%d, v%d' % (r, tmp))
        a('%s v%d, v%d, v%d' % (op, r, r, tmp))
        a('v_mov_b32 v%d, v%d' % (tmp, r))
        a('v_permlane16_swap_b32 v%d, v%d' % (r, tmp))
        a('%s v%d, v%d, v%d' % (op, r, r, tmp))

    def combine(o01, o23):
        a('v_mov_b32 v%d, v%d' % (T + 4, ML))
        allreduce_groups(T + 4, T + 5, 'v_max_f32')
        a('v_sub_f32 v%d, v%d, v%d' % (AL, ML, T + 4))
        a('v_exp_f32 v%d, v%d' % (AL, AL))
        a('v_lshlrev_b32 v%d, 3, v%d' % (T + 6, V_W))
        for e in range(0, 8, 2):
            a('v_pk_mul_f32 v[%d:%d], v[%d:%d], v[%d:%d] op_sel:[0,1] op_sel_hi:[1,1]' % (ACC + e, ACC + e + 1, ACC + e, ACC + e + 1, AL - 1, AL))
        a('v_mul_f32 v%d, v%d, v%d' % (T + 5, AL, L))
        allreduce_groups(T + 5, T + 7, 'v_add_f32')
        reduce8_to_lds(ACC)
        a('ds_write_b64 v%d, v[%d:%d] offset:%d' % (T + 6, T + 4, T + 5, ST))
        a('v_and_b32 v%d, 7, v%d' % (T + 6, V_J))
        a('v_lshlrev_b32 v%d, 3, v%d' % (T + 6, T + 6))
        a('s_waitcnt lgkmcnt(0)')
        a('s_barrier')
        a('ds_read_b64 v[%d:%d], v%d offset:%d' % (T, T + 1, T + 6, ST))
        a('ds_read_b64 v[%d:%d], v%d offset:%d' % (T + 2, T + 3, V_LR, PART))
        a('s_waitcnt lgkmcnt(1)')
        a('v_mov_b32 v%d, v%d' % (T + 4, T))
        sum8([T + 4], 'v_max_f32')
        a('v_sub_f32 v%d, v%d, v%d' % (T, T, T + 4))
        a('v_exp_f32 v%d, v%d' % (T, T))
        a('s_waitcnt lgkmcnt(0)')
        a('v_mul_f32 v%d, v%d, v%d' % (T + 1, T, T + 1))
        a('v_mul_f32 v%d, v%d, v%d' % (T + 2, T, T + 2))
        a('v_mul_f32 v%d, v%d, v%d' % (T + 3, T, T + 3))
        sum8([T + 1, T + 2, T + 3])
        a('v_rcp_f32 v%d, v%d' % (T + 1, T + 1))
        a('v_cmp_gt_u32 vcc, 8, v%d' % V_J)
        a('v_mul_f32 v%d, v%d, v%d' % (T + 2, T + 2, T + 1))
        a('v_mul_f32 v%d, v%d, v%d' % (T + 3, T + 3, T + 1))
        a('v_cvt_pk_bf16_f32 v%d, v%d, v%d' % (T, T + 2, T + 3))
        a('v_mov_b32_dpp v%d, v%d row_ror:8 row_mask:0xf bank_mask:0xf' % (T + 1, T))
        a('v_cndmask_b32 v%d, v%d, v%d, vcc' % (o01, T + 1, T))
        a('v_cndmask_b32 v%d, v%d, v%d, vcc' % (o23, T, T + 1))

    def project(base, o01, o23, side):
        a('v_mul_u32_u24 v%d, 2560, v%d' % (T + 6, V_W))
        a('v_lshl_add_u32 v%d, v%d, 5, v%d' % (T + 6, V_J, T + 6))
        a('v_lshl_add_u32 v%d, v%d, 3, v%d' % (T + 6, V_G, T + 6))
        for cb in range(5):
            for i in range(8):
                r = base + 16 * cb + i
                a('v_dot2_f32_bf16 v%d, v%d, v%d, 0' % (r, r, o01))
        for cb in range(5):
            for i in range(8):
                r = base + 16 * cb + i
                a('v_dot2_f32_bf16 v%d, v%d, v%d, v%d' % (r, r + 8, o23, r))
        def el(cb, e): return base + 16 * cb + (e >> 1) + 4 * (e & 1)
        for cb in range(5):
            for e in range(4):
                a('v_permlane32_swap_b32 v%d, v%d' % (el(cb, e), el(cb, e + 4)))
        for cb in range(5):
            for e in range(4):
                a('v_add_f32 v%d, v%d, v%d' % (el(cb, e), el(cb, e), el(cb, e + 4)))
        for cb in range(5):
            for e in range(2):
                a('v_permlane16_swap_b32 v%d, v%d' % (el(cb, e), el(cb, e + 2)))
        for cb in range(5):
            a('v_add_f32 v%d, v%d, v%d' % (base + 16 * cb, el(cb, 0), el(cb, 2)))
            a('v_add_f32 v%d, v%d, v%d' % (base + 16 * cb + 1, el(cb, 1), el(cb, 3)))
        for cb in range(5):
            a('ds_write_b64 v%d, v[%d:%d] offset:%d' % (T + 6, base + 16 * cb, base + 16 * cb + 1, RED + cb * 512))
        a('s_waitcnt lgkmcnt(0)')
        a('s_barrier')
        lbl = 'L_nored_%d' % side
        a('s_cmp_ge_u32 s%d, 5' % S_W)
        a('s_cbranch_scc1 %s' % lbl)
        a('v_lshlrev_b32 v%d, 3, v0' % (T + 6))
        for p in range(8):
            a('ds_read_b64 v[%d:%d], v%d offset:%d' % (base + 2 * p, base + 2 * p + 1, T + 6, RED + p * 2560))
        a('s_mul_i32 s%d, s%d, 5120' % (S_T0, S_BH))
        a('s_add_u32 s%d, s%d, %d' % (S_T0, S_T0, side * 2560))
        a('s_waitcnt lgkmcnt(0)')
        for st in (4, 2, 1):
            for p in range(st):
                a('v_pk_add_f32 v[%d:%d], v[%d:%d], v[%d:%d]' % (base + 2 * p, base + 2 * p + 1, base + 2 * p, base + 2 * p + 1, base + 2 * (p + st), base + 2 * (p + st) + 1))
        a('v_min_u32 v%d, -2, v%d' % (base, base))
        a('v_min_u32 v%d, -2, v%d' % (base + 1, base + 1))
        a('buffer_store_dwordx2 v[%d:%d], v%d, %s, s%d offen sc1' % (base, base + 1, T + 6, srd(WS), S_T0), tag=('st', side))
        a.vq.remove(('st', side))
        a.label(lbl)

    a.wait_vm('xa')
    qproj_partial(WA, 'wqa', XAr)
    stamp(1)
    load_x(XBr, XB, 'xb')
    qproj_finish(QBA)
    load_q(QBA)
    init_state()
    stamp(2)
    a('s_mov_b32 s%d, 0' % S_IT)
    ring = [('k', i) for i in range(4)] + [('v', i) for i in range(4)]
    a.vq = list(ring)
    a('s_nop 2')
    a.label('L_loop')
    a('s_add_u32 s%d, s%d, 32768' % (S_OFF, S_OFF))
    chunk()
    assert a.vq == ring, a.vq
    if loopbar:
        a('s_barrier')
    stamp_it()
    a('s_cmp_ge_u32 s%d, 18' % S_IT)
    a('s_cbranch_scc1 L_late')
    for i in range(18):
        a('s_cmp_eq_u32 s%d, %d' % (S_IT, i))
        a('s_cbranch_scc1 L_side%d' % i)
    a.label('L_next')
    a('s_add_u32 s%d, s%d, 1' % (S_IT, S_IT))
    a('s_nop 2')
    a('s_branch L_loop')

    def side(i):
        a.label('L_side%d' % i)
        a.vq = list(ring)
        if i <= 4:
            load_wq(WB, WQB, 'wqb', 4 * i, 4 * i + 4)
        if i == 1:
            a('s_waitcnt vmcnt(12)')
            a('s_barrier')
            a('s_cmp_lg_u32 s%d, 0' % S_W)
            a('s_cbranch_scc1 L_next')
            a('s_lshl_b32 s%d, s%d, 2' % (S_T0, S_B))
            a('v_mov_b32 v%d, 0' % (T + 1))
            a('v_mov_b32 v%d, 1' % T)
            a('s_mov_b64 exec, 1')
            a('buffer_atomic_add v%d, v%d, %s, s%d offen' % (T, T + 1, srd(DBG), S_T0))
            a('s_mov_b64 exec, -1')
        if i == 6:
            a('s_waitcnt vmcnt(8)')
            qproj_partial(WB, None, XBr)
            qproj_finish(QBB)
            for k in range(3):
                a('s_mov_b32 s%d, s%d' % (KN + k, KB + k))
                a('s_mov_b32 s%d, s%d' % (VN + k, VB + k))
            a('s_sub_u32 s%d, s%d, 32768' % (S_OFF, S_WOFF))
        if i == 7:
            combine(OA, OA + 1)
            load_q(QBB)
            init_state()
        if 7 <= i <= 11:
            load_wo(WA, WOA, i - 7)
        if i == 13:
            a('s_waitcnt vmcnt(8)')
            pair_wo(WA)
            project(WA, OA, OA + 1, 0)
        if 8 <= i <= 12:
            pass
        if 12 <= i <= 16:
            load_wo(WB, WOB, i - 12)
        a('s_branch L_next')
    for i in range(18):
        side(i)
    a.label('L_late')
    a.vq = list(ring)
    a('s_cmp_lg_u32 s%d, 18' % S_IT)
    a('s_cbranch_scc1 L_late2')
    a('s_waitcnt vmcnt(8)')
    pair_wo(WB)
    a('s_branch L_next')
    a.label('L_late2')
    a('s_cmp_lt_u32 s%d, 38' % S_IT)
    a('s_cbranch_scc1 L_next')
    a('s_cmp_eq_u32 s%d, 39' % S_IT)
    a('s_cbranch_scc1 L_done')
    a('s_mov_b32 s%d, 0' % (KN + 2))
    a('s_mov_b32 s%d, 0' % (VN + 2))
    a('s_lshl_b32 s%d, s%d, 2' % (S_T0, S_B))
    a('v_mov_b32 v%d, 0' % (T + 1))
    a('buffer_load_dword v%d, v%d, %s, s%d offen sc1' % (V_CNT, T + 1, srd(DBG), S_T0))
    a('s_branch L_next')
    a.label('L_done')
    stamp(3)
    combine(OA, OA + 1)
    stamp(4)
    project(WB, OA, OA + 1, 1)
    stamp(5)
    a('s_cmp_eq_u32 s%d, 5' % S_W)
    a('s_cbranch_scc1 L_finA')
    a('s_cmp_lg_u32 s%d, 6' % S_W)
    a('s_cbranch_scc1 L_fin_end')
    a('s_cmp_ge_u32 s%d, 20' % S_H)
    a('s_cbranch_scc1 L_fin_end')
    a('s_lshl_b32 s%d, s%d, 7' % (S_T1, S_H))
    a('s_add_u32 s%d, s%d, 2560' % (S_T1, S_T1))
    a('s_branch L_fin')
    a.label('L_finA')
    a('s_cmp_lt_u32 s%d, 12' % S_H)
    a('s_cbranch_scc1 L_fin_end')
    a('s_sub_u32 s%d, s%d, 12' % (S_T1, S_H))
    a('s_lshl_b32 s%d, s%d, 7' % (S_T1, S_T1))
    a.label('L_fin')
    a('s_mov_b32 s%d, %d' % (S_SPIN, spin_limit))
    a('s_lshl_b32 s%d, s%d, 2' % (S_T0, S_B))
    a('v_mov_b32 v%d, 0' % (T + 1))
    a.label('L_cnt')
    a('s_waitcnt vmcnt(0)')
    a('v_readfirstlane_b32 s%d, v%d' % (S_TS, V_CNT))
    a('s_cmp_eq_u32 s%d, 32' % S_TS)
    a('s_cbranch_scc1 L_cnt_ok')
    a('s_sub_u32 s%d, s%d, 1' % (S_SPIN, S_SPIN))
    a('s_cbranch_scc1 L_fin_end')
    a('buffer_load_dword v%d, v%d, %s, s%d offen sc1' % (V_CNT, T + 1, srd(DBG), S_T0))
    a('s_branch L_cnt')
    a.label('L_cnt_ok')
    a('v_lshrrev_b32 v%d, 7, v%d' % (T, V_KV))
    a('v_mul_u32_u24 v%d, 5120, v%d' % (T, T))
    a('v_and_b32 v%d, 0x70, v%d' % (T + 1, V_KV))
    a('v_add_u32 v%d, v%d, v%d' % (T, T, T + 1))
    a('s_mul_i32 s%d, s%d, 163840' % (S_T0, S_B))
    a('s_add_u32 s%d, s%d, s%d' % (S_T0, S_T0, S_T1))
    for i in range(1, 4):
        a('s_add_u32 s%d, s%d, %d' % (32 + i, S_T0, i * 40960))
    a.label('L_poll')
    for i in range(4):
        a('buffer_load_dwordx4 %s, v%d, %s, s%d offen sc1' % (vq(RK + 4 * i), T, srd(WS), S_T0 if i == 0 else 32 + i))
    a('s_waitcnt vmcnt(0)')
    a('v_max3_u32 v%d, v%d, v%d, v%d' % (T + 2, RK, RK + 1, RK + 2))
    for i in range(3, 15, 2):
        a('v_max3_u32 v%d, v%d, v%d, v%d' % (T + 2, T + 2, RK + i, RK + i + 1))
    a('v_max_u32 v%d, v%d, v%d' % (T + 2, T + 2, RK + 15))
    a('v_cmp_eq_u32 vcc, -1, v%d' % (T + 2))
    a('s_nop 4')
    a('s_cbranch_vccz L_got')
    a('s_sub_u32 s%d, s%d, 1' % (S_SPIN, S_SPIN))
    a('s_cbranch_scc1 L_fin_end')
    a('s_sleep 2')
    a('s_branch L_poll')
    a.label('L_got')
    for i in (8, 4):
        for r in range(0, i, 2):
            a('v_pk_add_f32 v[%d:%d], v[%d:%d], v[%d:%d]' % (RK + r, RK + r + 1, RK + r, RK + r + 1, RK + r + i, RK + r + i + 1))
    for r in range(4):
        a('v_add_f32_dpp v%d, v%d, v%d row_ror:8 row_mask:0xf bank_mask:0xf' % (RK + r, RK + r, RK + r))
    a('v_permlane32_swap_b32 v%d, v%d' % (RK, RK + 2))
    a('v_permlane32_swap_b32 v%d, v%d' % (RK + 1, RK + 3))
    a('v_add_f32 v%d, v%d, v%d' % (RK, RK, RK + 2))
    a('v_add_f32 v%d, v%d, v%d' % (RK + 1, RK + 1, RK + 3))
    a('v_mov_b32 v%d, v%d' % (RK + 2, RK))
    a('v_mov_b32 v%d, v%d' % (RK + 3, RK + 1))
    a('v_permlane16_swap_b32 v%d, v%d' % (RK, RK + 2))
    a('v_permlane16_swap_b32 v%d, v%d' % (RK + 1, RK + 3))
    a('v_add_f32 v%d, v%d, v%d' % (RK, RK, RK + 2))
    a('v_add_f32 v%d, v%d, v%d' % (RK + 1, RK + 1, RK + 3))
    a('v_cvt_pk_bf16_f32 v%d, v%d, v%d' % (RK, RK, RK + 1))
    a('v_lshrrev_b32 v%d, 1, v%d' % (T + 1, T + 1))
    a('v_lshrrev_b32 v%d, 9, v%d' % (T + 2, V_KV))
    a('v_lshl_add_u32 v%d, v%d, 2, v%d' % (T + 1, T + 2, T + 1))
    a('s_mul_i32 s%d, s%d, 2560' % (S_T0, S_B))
    a('s_lshr_b32 s%d, s%d, 1' % (S_T1, S_T1))
    a('s_add_u32 s%d, s%d, s%d' % (S_T0, S_T0, S_T1))
    a('s_mov_b32 exec_lo, 0xff')
    a('s_mov_b32 exec_hi, 0xff')
    a('buffer_store_dword v%d, v%d, %s, s%d offen' % (RK, T + 1, srd(OUT), S_T0))
    a('s_mov_b64 exec, -1')
    a.label('L_fin_end')
    stamp(6)
    stamp_flush()
    a.label('L_end')
    a('s_endpgm')

    out = HEADER
    out += '; @launch grid=(256,1,1) block=(512,1,1) lds=%d\n' % LDS_BYTES
    out += '.amdgcn_target "amdgcn-amd-amdhsa--gfx950"\n.text\n.globl %s_kernel\n.p2align 8\n.type %s_kernel,@function\n%s_kernel:\n' % (NAME, NAME, NAME)
    out += a.text()
    out += """.section .rodata,"a"
.p2align 6
.amdhsa_kernel %s_kernel
  .amdhsa_next_free_vgpr 248
  .amdhsa_next_free_sgpr 102
  .amdhsa_accum_offset 248
  .amdhsa_group_segment_fixed_size 0
  .amdhsa_kernarg_size 104
  .amdhsa_user_sgpr_count 2
  .amdhsa_user_sgpr_kernarg_segment_ptr 1
  .amdhsa_system_sgpr_workgroup_id_x 1
.end_amdhsa_kernel
""" % NAME
    return out

if __name__ == '__main__':
    ap = argparse.ArgumentParser()
    ap.add_argument('-o', default='cdna_kernels/%s.s' % NAME)
    ap.add_argument('--timing', type=int, default=0)
    ap.add_argument('--mimic', type=int, default=1)
    ap.add_argument('--pbar', type=int, default=1)
    ap.add_argument('--loopbar', type=int, default=1)
    ap.add_argument('--wrot', type=int, default=1)
    args = ap.parse_args()
    open(args.o, 'w').write(gen(timing=args.timing, mimic=args.mimic, pbar=args.pbar, loopbar=args.loopbar, wrot=args.wrot))
```

```python
import sys, argparse
sys.path.insert(0, 'gen')
from asmlib import Asm

NAME = 'concat_heads__sliding_block_cached__mha_block_cached__decode'
HEADER = open('cdna_kernels/%s.s.ref' % NAME).read().split('; Override launch')[0]

def gen(timing=False, mimic=True, loopbar=1, deep=2, spin_limit=1 << 15, lds=90112):
    a = Asm()
    kvmod = ' nt'
    S_BH, S_W = 2, 3
    KN, VN, KB, VB, SD, WQB, WOA = 4, 8, 12, 16, 20, 24, 28
    WOB, XA, XB, WS, OUT, DBG = 60, 64, 68, 72, 76, 80
    S_MASK, S_SCALE, S_LOG2E, S_PLO, S_PHI = 84, 85, 86, 87, 88
    S_OFF, S_IT, S_T0, S_T1, S_B, S_H, S_WOFF = 89, 90, 91, 92, 93, 94, 95
    S_TS = 96
    S_SIDE, S_SPIN = 98, 99
    S_SO = 32
    V_KV, V_W, V_J, V_G, V_LW, V_LR, V_WA = 1, 2, 3, 4, 5, 6, 7
    RK, RV = 8, 24
    ACC, Q, S = 40, 48, 52
    M, ML, L, AL = 56, 57, 58, 59
    T = 60
    OA = 76
    V_WO, V_CNT, V_ST, V_X, V_SD = 78, 79, 80, 81, 82
    QACC = 84
    SG = 92
    XBr = 108
    W = 120
    P1 = 200
    XAr = 232
    P2 = 84
    NVGPR = 242
    PART, PSTR = 0, 544
    ST = 4352
    QBA, QBB = 4608, 4864
    RED = 5120

    def srd(i): return 's[%d:%d]' % (i, i + 3)
    def vq(i, n=4): return 'v[%d:%d]' % (i, i + n - 1)

    def stamp(k):
        if not timing: return
        a('s_memrealtime s[%d:%d]' % (S_TS, S_TS + 1))
        a('s_waitcnt lgkmcnt(0)')
        a('v_writelane_b32 v%d, s%d, %d' % (V_ST, S_TS, k))
    def stamp_it():
        if not timing: return
        a('s_memrealtime s[%d:%d]' % (S_TS, S_TS + 1))
        a('s_add_u32 m0, s%d, 8' % S_IT)
        a('s_waitcnt lgkmcnt(0)')
        a('v_writelane_b32 v%d, s%d, m0' % (V_ST, S_TS))
    def stamp_flush():
        if not timing: return
        a('s_lshl_b32 s%d, s%d, 11' % (S_T0, S_BH))
        a('s_lshl_b32 s%d, s%d, 8' % (S_T1, S_W))
        a('s_add_u32 s%d, s%d, s%d' % (S_T0, S_T0, S_T1))
        a('s_add_u32 s%d, s%d, 0x200000' % (S_T0, S_T0))
        a('v_lshrrev_b32 v%d, 2, v%d' % (T, V_KV))
        a('buffer_store_dword v%d, v%d, %s, s%d offen' % (V_ST, T, srd(WS), S_T0))

    a('s_cmp_ge_u32 s2, 256')
    a('s_cbranch_scc1 L_end')
    a('s_load_dwordx16 s[32:47], s[0:1], 0')
    a('s_load_dwordx8 s[48:55], s[0:1], 64')
    a('s_load_dwordx2 s[56:57], s[0:1], 96')
    if timing:
        a('v_mov_b32 v%d, -1' % V_ST)
        stamp(0)
    a('v_lshrrev_b32 v%d, 6, v0' % V_W)
    a('v_and_b32 v%d, 63, v0' % V_KV)
    a('s_lshr_b32 s%d, s2, 5' % S_B)
    a('s_and_b32 s%d, s2, 31' % S_H)
    a('v_add_u32 v%d, s%d, v%d' % (V_W, S_B, V_W))
    a('v_and_b32 v%d, 7, v%d' % (V_W, V_W))
    a('v_lshl_add_u32 v0, v%d, 6, v%d' % (V_W, V_KV))
    a('v_readfirstlane_b32 s%d, v%d' % (S_W, V_W))
    a('v_lshlrev_b32 v%d, 4, v%d' % (V_KV, V_KV))
    a('v_and_b32 v%d, 15, v0' % V_J)
    a('v_bfe_u32 v%d, v0, 4, 2' % V_G)
    a('v_mul_u32_u24 v%d, 655360, v%d' % (T, V_W))
    a('v_mul_u32_u24 v%d, 163840, v%d' % (T + 1, V_G))
    a('v_lshl_add_u32 v%d, v%d, 4, v%d' % (T, V_J, T))
    a('v_add_u32 v%d, v%d, v%d' % (V_WA, T, T + 1))
    a('v_mul_u32_u24 v%d, 160, v%d' % (V_X, V_W))
    a('v_mul_u32_u24 v%d, 40, v%d' % (T + 3, V_G))
    a('v_add_u32 v%d, v%d, v%d' % (V_X, V_X, T + 3))
    A_BASE = 3072 * 256
    a('s_lshl_b32 s%d, s%d, 12' % (S_WOFF, S_W))
    a('s_lshl_b32 s%d, s2, 20' % S_T0)
    a('s_mul_i32 s%d, s%d, 1280' % (S_T1, S_B))
    a('s_lshl_b32 s%d, s%d, 8' % (S_SPIN, S_H))
    a('s_sub_u32 s%d, 5242880, s%d' % (S_IT, S_SPIN))
    a('s_add_u32 s%d, s%d, %d' % (S_OFF, S_WOFF, A_BASE))
    a('s_add_u32 s%d, s%d, %d' % (S_MASK, S_WOFF, A_BASE + 32768))
    a('s_add_u32 s%d, s%d, %d' % (S_SCALE, S_WOFF, A_BASE + 65536))
    a('s_waitcnt lgkmcnt(0)')
    def mk_srd(d, ptr, off_sreg, nrec):
        if off_sreg is None:
            a('s_mov_b32 s%d, s%d' % (d, ptr))
            a('s_mov_b32 s%d, s%d' % (d + 1, ptr + 1))
        else:
            a('s_add_u32 s%d, s%d, s%d' % (d, ptr, off_sreg))
            a('s_addc_u32 s%d, s%d, 0' % (d + 1, ptr + 1))
        if isinstance(nrec, int):
            a('s_mov_b32 s%d, %d' % (d + 2, nrec))
        else:
            a('s_mov_b32 s%d, s%d' % (d + 2, nrec[0]))
        a('s_mov_b32 s%d, 0x00020000' % (d + 3))
    mk_srd(XA, 32, S_T1, 1280)
    mk_srd(SD, 38, S_SPIN, (S_IT,))
    mk_srd(KN, 34, S_T0, 1 << 20)
    mk_srd(VN, 36, S_T0, 1 << 20)
    def load_x(xr, srdi, tag):
        a('buffer_load_dwordx4 %s, v%d, %s, 0 offen' % (vq(xr), V_X, srd(srdi)))
        a('buffer_load_dwordx4 %s, v%d, %s, 0 offen offset:16' % (vq(xr + 4), V_X, srd(srdi)))
        a('buffer_load_dwordx2 %s, v%d, %s, 0 offen offset:32' % (vq(xr + 8, 2), V_X, srd(srdi)), tag=tag)
    load_x(XAr, XA, 'xa')
    def ldKV(reg, srdi, soff, n, tag):
        a('buffer_load_dwordx4 %s, v%d, %s, s%d offen offset:%d%s' % (vq(reg), V_KV, srd(srdi), soff, n * 1024, kvmod), tag=tag)
    def ldK(n): ldKV(RK + 4 * n, KN, S_OFF, n, ('k', n))
    def ldV(n): ldKV(RV + 4 * n, VN, S_OFF, n, ('v', n))
    kv = []
    sets = [(RK, S_OFF, '')] + [(P1, S_MASK, 'p1'), (P2, S_SCALE, 'p2')][:deep]
    for (base, so, tg) in sets:
        for n in range(4): kv.append((base + 4 * n, KN, so, n, (tg + 'k', n)))
        for n in range(4): kv.append((base + 16 + 4 * n, VN, so, n, (tg + 'v', n)))
    nkv = len(kv); ki = 0
    for n in range(20):
        a('s_mov_b32 s%d, %d' % (S_TS, n * 8192))
        a('buffer_load_dwordx4 %s, v%d, %s, s%d offen' % (vq(W + 4 * n), V_WA, srd(SD), S_TS), tag=('wqa', n))
        while ki < nkv and ki * 20 < (n + 1) * nkv:
            ldKV(*kv[ki]); ki += 1
    while ki < nkv:
        ldKV(*kv[ki]); ki += 1
    mk_srd(XB, 42, S_T1, 1280)
    mk_srd(WQB, 48, S_SPIN, (S_IT,))
    mk_srd(KB, 44, S_T0, 1 << 20)
    mk_srd(VB, 46, S_T0, 1 << 20)
    a('s_mul_i32 s%d, s%d, 163840' % (S_T1, S_H))
    mk_srd(WOA, 40, S_T1, 163840)
    mk_srd(WOB, 50, S_T1, 163840)
    mk_srd(WS, 56, None, 0x400000 if timing else 256 * 5120)
    mk_srd(OUT, 52, None, 8 * 1280 * 2)
    mk_srd(DBG, 54, None, 256)
    a('s_mov_b32 s%d, 0xffff0000' % S_MASK)
    a('s_mov_b32 s%d, 0x3db504f3' % S_SCALE)
    a('s_mov_b32 s%d, 0x3fb8aa3b' % S_LOG2E)
    a('s_mov_b32 s%d, 0x05040100' % S_PLO)
    a('s_mov_b32 s%d, 0x07060302' % S_PHI)
    a('s_mov_b32 s%d, 0' % S_SIDE)
    a('v_mul_u32_u24 v%d, 20480, v%d' % (V_WO, V_W))
    a('v_mul_u32_u24 v%d, 5120, v%d' % (T + 1, V_G))
    a('v_lshl_add_u32 v%d, v%d, 4, v%d' % (V_WO, V_J, V_WO))
    a('v_add_u32 v%d, v%d, v%d' % (V_WO, V_WO, T + 1))
    a('v_mul_u32_u24 v%d, %d, v%d' % (V_LW, PSTR, V_W))
    a('v_lshl_add_u32 v%d, v%d, 5, v%d' % (V_LW, V_J, V_LW))
    a('v_lshl_add_u32 v%d, v%d, 3, v%d' % (V_LW, V_G, V_LW))
    a('v_and_b32 v%d, 7, v%d' % (T, V_J))
    a('v_mul_u32_u24 v%d, %d, v%d' % (V_LR, PSTR, T))
    a('v_lshl_add_u32 v%d, v%d, 6, v%d' % (V_LR, V_W, V_LR))
    a('v_lshl_add_u32 v%d, v%d, 4, v%d' % (V_LR, V_G, V_LR))
    a('v_and_b32 v%d, 8, v%d' % (T, V_J))
    a('v_add_u32 v%d, v%d, v%d' % (V_LR, V_LR, T))
    a('s_cmp_ge_u32 s%d, 5' % S_W)
    a('s_cbranch_scc1 L_noinit')
    for i in range(4):
        a('v_mov_b32 v%d, -1' % (T + i))
    a('s_mul_i32 s%d, s%d, 5120' % (S_T0, S_BH))
    a('s_lshl_b32 s%d, s%d, 10' % (S_T1, S_W))
    a('s_add_u32 s%d, s%d, s%d' % (S_T0, S_T0, S_T1))
    a('buffer_store_dwordx4 %s, v%d, %s, s%d offen sc1' % (vq(T), V_KV, srd(WS), S_T0), tag='init')
    a.vq.remove('init')
    a('s_nop 1')
    a.label('L_noinit')

    def reduce8_to_lds(acc):
        for e in range(4):
            a('v_permlane32_swap_b32 v%d, v%d' % (acc + e, acc + 4 + e))
        for e in range(4):
            a('v_add_f32 v%d, v%d, v%d' % (acc + e, acc + e, acc + 4 + e))
        for e in range(2):
            a('v_permlane16_swap_b32 v%d, v%d' % (acc + e, acc + 2 + e))
        for e in range(2):
            a('v_add_f32 v%d, v%d, v%d' % (acc + e, acc + e, acc + 2 + e))
        a('ds_write_b64 v%d, v[%d:%d] offset:%d' % (V_LW, acc, acc + 1, PART))

    def rowsum(regs, op='v_add_f32'):
        for step in (8, 4, 2, 1):
            for r in regs:
                a('%s_dpp v%d, v%d, v%d row_ror:%d row_mask:0xf bank_mask:0xf' % (op, r, r, r, step))
    def sum8(regs, op='v_add_f32'):
        for m in ('quad_perm:[1,0,3,2]', 'quad_perm:[2,3,0,1]', 'row_half_mirror'):
            for r in regs:
                a('%s_dpp v%d, v%d, v%d %s row_mask:0xf bank_mask:0xf' % (op, r, r, r, m))

    def qpair(b0, xreg, acc, first):
        for d in range(4):
            ra, rb = b0 + d, b0 + 4 + d
            a('v_perm_b32 v%d, v%d, v%d, s%d' % (T + 2 * d, rb, ra, S_PLO))
            a('v_perm_b32 v%d, v%d, v%d, s%d' % (T + 2 * d + 1, rb, ra, S_PHI))
        for e in range(8):
            c = '0' if first else 'v%d' % (acc + e)
            a('v_dot2_f32_bf16 v%d, v%d, v%d, %s' % (acc + e, T + e, xreg, c))

    def qproj_finish(acc, qb):
        reduce8_to_lds(acc)
        a('s_waitcnt lgkmcnt(0)')
        a('s_barrier')
        a('ds_read_b64 v[%d:%d], v%d offset:%d' % (T, T + 1, V_LR, PART))
        a('v_lshlrev_b32 v%d, 5, v%d' % (T + 2, V_W))
        a('v_lshl_add_u32 v%d, v%d, 3, v%d' % (T + 2, V_G, T + 2))
        a('v_lshrrev_b32 v%d, 3, v%d' % (T + 3, V_J))
        a('v_lshl_add_u32 v%d, v%d, 2, v%d' % (T + 2, T + 3, T + 2))
        a('s_waitcnt lgkmcnt(0)')
        sum8([T, T + 1])
        a('v_cvt_pk_bf16_f32 v%d, v%d, v%d' % (T, T, T + 1))
        a('ds_write_b32 v%d, v%d offset:%d' % (T + 2, T, qb))
        a('s_waitcnt lgkmcnt(0)')
        a('s_barrier')

    def load_q(qb):
        a('v_lshlrev_b32 v%d, 4, v%d' % (T, V_J))
        a('ds_read_b128 %s, v%d offset:%d' % (vq(Q), T, qb))
        a('s_waitcnt lgkmcnt(0)')

    def init_state():
        a('v_mov_b32 v%d, 0xff800000' % M)
        a('v_mov_b32 v%d, 0xff800000' % ML)
        a('v_mov_b32 v%d, 0' % L)
        for e in range(8):
            a('v_mov_b32 v%d, 0' % (ACC + e))

    def round_bf16(regs):
        a('v_cvt_pk_bf16_f32 v%d, v%d, v%d' % (T, regs[0], regs[1]))
        a('v_cvt_pk_bf16_f32 v%d, v%d, v%d' % (T + 1, regs[2], regs[3]))
        a('v_lshlrev_b32 v%d, 16, v%d' % (regs[0], T))
        a('v_and_b32 v%d, s%d, v%d' % (regs[1], S_MASK, T))
        a('v_lshlrev_b32 v%d, 16, v%d' % (regs[2], T + 1))
        a('v_and_b32 v%d, s%d, v%d' % (regs[3], S_MASK, T + 1))

    def chunk(rk=RK, tg='', prefetch=True):
        rv = rk + 16
        for n in range(4):
            a.wait_vm((tg + 'k', n))
            for d in range(4):
                c = '0' if d == 0 else 'v%d' % (S + n)
                a('v_dot2_f32_bf16 v%d, v%d, v%d, %s' % (S + n, rk + 4 * n + d, Q + d, c))
            if prefetch: ldK(n)
        sr = [S, S + 1, S + 2, S + 3]
        rowsum(sr)
        if mimic: round_bf16(sr)
        for r in sr:
            a('v_mul_f32 v%d, s%d, v%d' % (r, S_SCALE, r))
        if mimic: round_bf16(sr)
        a('v_max3_f32 v%d, v%d, v%d, v%d' % (M, sr[0], sr[1], M))
        a('v_max3_f32 v%d, v%d, v%d, v%d' % (M, sr[2], sr[3], M))
        a('v_mul_f32 v%d, s%d, v%d' % (T + 2, S_LOG2E, M))
        a('v_sub_f32 v%d, v%d, v%d' % (AL, ML, T + 2))
        a('v_exp_f32 v%d, v%d' % (AL, AL))
        for r in sr:
            a('v_fma_f32 v%d, v%d, s%d, -v%d' % (r, r, S_LOG2E, T + 2))
        a('v_mov_b32 v%d, v%d' % (ML, T + 2))
        for r in sr:
            a('v_exp_f32 v%d, v%d' % (r, r))
        for e in range(0, 8, 2):
            a('v_pk_mul_f32 v[%d:%d], v[%d:%d], v[%d:%d] op_sel:[0,1] op_sel_hi:[1,1]' % (ACC + e, ACC + e + 1, ACC + e, ACC + e + 1, AL - 1, AL))
        a('v_fma_f32 v%d, v%d, v%d, v%d' % (L, L, AL, sr[0]))
        a('v_add_f32 v%d, v%d, v%d' % (T + 3, sr[1], sr[2]))
        a('v_add_f32 v%d, v%d, v%d' % (L, L, sr[3]))
        a('v_add_f32 v%d, v%d, v%d' % (L, L, T + 3))
        for n in range(4):
            a.wait_vm((tg + 'v', n))
            for d in range(4):
                a('v_lshlrev_b32 v%d, 16, v%d' % (T + 4 + 2 * d, rv + 4 * n + d))
                a('v_and_b32 v%d, s%d, v%d' % (T + 5 + 2 * d, S_MASK, rv + 4 * n + d))
            if prefetch: ldV(n)
            pb = S + (n & ~1); sel = n & 1
            for e in range(0, 8, 2):
                a('v_pk_fma_f32 v[%d:%d], v[%d:%d], v[%d:%d], v[%d:%d] op_sel:[0,%d,0] op_sel_hi:[1,%d,1]' % (
                    ACC + e, ACC + e + 1, T + 4 + e, T + 5 + e, pb, pb + 1, ACC + e, ACC + e + 1, sel, sel))

    def set_stage_wq(rnd):
        for k in range(4):
            a('s_mov_b32 s%d, %d' % (S_SO + k, (4 * rnd + k) * 8192))
    def set_stage_wo(srdi, cb):
        if cb == 0:
            for k in range(3):
                a('s_mov_b32 s%d, s%d' % (SD + k, srdi + k))
            a('v_mov_b32 v%d, v%d' % (V_SD, V_WO))
        for k in range(4):
            a('s_mov_b32 s%d, %d' % (S_SO + k, k * 1280 + cb * 256))
    def stage_null():
        a('s_mov_b32 s%d, 0' % (SD + 2))
    def pair_stage(cb):
        for pr in range(2):
            for d in range(4):
                ra, rb = SG + 8 * pr + d, SG + 8 * pr + 4 + d
                a('v_perm_b32 v%d, v%d, v%d, s%d' % (W + 16 * cb + 8 * pr + d, rb, ra, S_PLO))
                a('v_perm_b32 v%d, v%d, v%d, s%d' % (W + 16 * cb + 8 * pr + 4 + d, rb, ra, S_PHI))

    def allreduce_groups(r, tmp, op):
        a('v_mov_b32 v%d, v%d' % (tmp, r))
        a('v_permlane32_swap_b32 v%d, v%d' % (r, tmp))
        a('%s v%d, v%d, v%d' % (op, r, r, tmp))
        a('v_mov_b32 v%d, v%d' % (tmp, r))
        a('v_permlane16_swap_b32 v%d, v%d' % (r, tmp))
        a('%s v%d, v%d, v%d' % (op, r, r, tmp))

    def combine(o01, o23):
        a('v_mov_b32 v%d, v%d' % (T + 4, ML))
        allreduce_groups(T + 4, T + 5, 'v_max_f32')
        a('v_sub_f32 v%d, v%d, v%d' % (AL, ML, T + 4))
        a('v_exp_f32 v%d, v%d' % (AL, AL))
        a('v_lshlrev_b32 v%d, 3, v%d' % (T + 6, V_W))
        for e in range(0, 8, 2):
            a('v_pk_mul_f32 v[%d:%d], v[%d:%d], v[%d:%d] op_sel:[0,1] op_sel_hi:[1,1]' % (ACC + e, ACC + e + 1, ACC + e, ACC + e + 1, AL - 1, AL))
        a('v_mul_f32 v%d, v%d, v%d' % (T + 5, AL, L))
        allreduce_groups(T + 5, T + 7, 'v_add_f32')
        reduce8_to_lds(ACC)
        a('ds_write_b64 v%d, v[%d:%d] offset:%d' % (T + 6, T + 4, T + 5, ST))
        a('v_and_b32 v%d, 7, v%d' % (T + 6, V_J))
        a('v_lshlrev_b32 v%d, 3, v%d' % (T + 6, T + 6))
        a('s_waitcnt lgkmcnt(0)')
        a('s_barrier')
        a('ds_read_b64 v[%d:%d], v%d offset:%d' % (T, T + 1, T + 6, ST))
        a('ds_read_b64 v[%d:%d], v%d offset:%d' % (T + 2, T + 3, V_LR, PART))
        a('s_waitcnt lgkmcnt(1)')
        a('v_mov_b32 v%d, v%d' % (T + 4, T))
        sum8([T + 4], 'v_max_f32')
        a('v_sub_f32 v%d, v%d, v%d' % (T, T, T + 4))
        a('v_exp_f32 v%d, v%d' % (T, T))
        a('s_waitcnt lgkmcnt(0)')
        a('v_mul_f32 v%d, v%d, v%d' % (T + 1, T, T + 1))
        a('v_mul_f32 v%d, v%d, v%d' % (T + 2, T, T + 2))
        a('v_mul_f32 v%d, v%d, v%d' % (T + 3, T, T + 3))
        sum8([T + 1, T + 2, T + 3])
        a('v_rcp_f32 v%d, v%d' % (T + 1, T + 1))
        a('v_cmp_gt_u32 vcc, 8, v%d' % V_J)
        a('v_mul_f32 v%d, v%d, v%d' % (T + 2, T + 2, T + 1))
        a('v_mul_f32 v%d, v%d, v%d' % (T + 3, T + 3, T + 1))
        a('v_cvt_pk_bf16_f32 v%d, v%d, v%d' % (T, T + 2, T + 3))
        a('v_mov_b32_dpp v%d, v%d row_ror:8 row_mask:0xf bank_mask:0xf' % (T + 1, T))
        a('v_cndmask_b32 v%d, v%d, v%d, vcc' % (o01, T + 1, T))
        a('v_cndmask_b32 v%d, v%d, v%d, vcc' % (o23, T, T + 1))

    def project(base, o01, o23):
        a('v_mul_u32_u24 v%d, 2560, v%d' % (T + 6, V_W))
        a('v_lshl_add_u32 v%d, v%d, 5, v%d' % (T + 6, V_J, T + 6))
        a('v_lshl_add_u32 v%d, v%d, 3, v%d' % (T + 6, V_G, T + 6))
        for cb in range(5):
            for i in range(8):
                r = base + 16 * cb + i
                a('v_dot2_f32_bf16 v%d, v%d, v%d, 0' % (r, r, o01))
        for cb in range(5):
            for i in range(8):
                r = base + 16 * cb + i
                a('v_dot2_f32_bf16 v%d, v%d, v%d, v%d' % (r, r + 8, o23, r))
        def el(cb, e): return base + 16 * cb + (e >> 1) + 4 * (e & 1)
        for cb in range(5):
            for e in range(4):
                a('v_permlane32_swap_b32 v%d, v%d' % (el(cb, e), el(cb, e + 4)))
        for cb in range(5):
            for e in range(4):
                a('v_add_f32 v%d, v%d, v%d' % (el(cb, e), el(cb, e), el(cb, e + 4)))
        for cb in range(5):
            for e in range(2):
                a('v_permlane16_swap_b32 v%d, v%d' % (el(cb, e), el(cb, e + 2)))
        for cb in range(5):
            a('v_add_f32 v%d, v%d, v%d' % (base + 16 * cb, el(cb, 0), el(cb, 2)))
            a('v_add_f32 v%d, v%d, v%d' % (base + 16 * cb + 1, el(cb, 1), el(cb, 3)))
        for cb in range(5):
            a('ds_write_b64 v%d, v[%d:%d] offset:%d' % (T + 6, base + 16 * cb, base + 16 * cb + 1, RED + cb * 512))
        a('s_waitcnt lgkmcnt(0)')
        a('s_barrier')
        a('s_cmp_ge_u32 s%d, 5' % S_W)
        a('s_cbranch_scc1 L_nored')
        a('v_lshlrev_b32 v%d, 3, v0' % (T + 6))
        for p in range(8):
            a('ds_read_b64 v[%d:%d], v%d offset:%d' % (base + 2 * p, base + 2 * p + 1, T + 6, RED + p * 2560))
        a('s_mul_i32 s%d, s%d, 5120' % (S_T0, S_BH))
        a('s_mul_i32 s%d, s%d, 2560' % (S_T1, S_SIDE))
        a('s_add_u32 s%d, s%d, s%d' % (S_T0, S_T0, S_T1))
        a('s_waitcnt lgkmcnt(0)')
        for st in (4, 2, 1):
            for p in range(st):
                a('v_pk_add_f32 v[%d:%d], v[%d:%d], v[%d:%d]' % (base + 2 * p, base + 2 * p + 1, base + 2 * p, base + 2 * p + 1, base + 2 * (p + st), base + 2 * (p + st) + 1))
        a('v_min_u32 v%d, -2, v%d' % (base, base))
        a('v_min_u32 v%d, -2, v%d' % (base + 1, base + 1))
        a('buffer_store_dwordx2 v[%d:%d], v%d, %s, s%d offen sc1' % (base, base + 1, T + 6, srd(WS), S_T0), tag='st')
        a.vq.remove('st')
        a.label('L_nored')

    a.wait_vm('xa')
    for t in range(10):
        a.wait_vm(('wqa', 2 * t + 1))
        qpair(W + 8 * t, XAr + t, T + 8, t == 0)
    stamp(1)
    qproj_finish(T + 8, QBA)
    load_q(QBA)
    init_state()
    stamp(2)
    first_it = 1 + deep
    a('s_add_u32 s%d, s%d, %d' % (S_OFF, S_OFF, 32768 * (1 + deep)))
    chunk()
    if deep >= 1: chunk(P1, 'p1', False)
    if deep >= 2: chunk(P2, 'p2', False)
    load_x(XBr, XB, 'xb')
    for k in range(3):
        a('s_mov_b32 s%d, s%d' % (SD + k, WQB + k))
    a('v_mov_b32 v%d, v%d' % (V_SD, V_WA))
    set_stage_wq(1)
    for k in range(4):
        a('buffer_load_dwordx4 %s, v%d, %s, s%d offen' % (vq(P1 + 4 * k), V_SD, srd(SD), S_SO + k))
    set_stage_wq(0)
    a('s_mov_b32 s%d, %d' % (S_IT, first_it - 1))
    ring = [('k', i) for i in range(4)] + [('v', i) for i in range(4)]
    stg = [('sg', i) for i in range(4)]
    a.label('L_next')
    a.vq = list(ring)
    for k in range(4):
        a('buffer_load_dwordx4 %s, v%d, %s, s%d offen' % (vq(SG + 4 * k), V_SD, srd(SD), S_SO + k), tag=('sg', k))
    a('s_add_u32 s%d, s%d, 1' % (S_IT, S_IT))
    a('s_add_u32 s%d, s%d, 32768' % (S_OFF, S_OFF))
    chunk()
    assert a.vq == stg + ring or a.vq == ring, a.vq
    if loopbar:
        a('s_barrier')
    stamp_it()
    LAST_SIDE = 18
    a('s_cmp_gt_u32 s%d, %d' % (S_IT, LAST_SIDE))
    a('s_cbranch_scc1 L_late')
    a('s_waitcnt vmcnt(8)')
    for i in range(first_it, LAST_SIDE):
        a('s_cmp_eq_u32 s%d, %d' % (S_IT, i))
        a('s_cbranch_scc1 L_side%d' % i)
    assert first_it == 3
    def side(i):
        a.label('L_side%d' % i)
        a.vq = list(ring)
        if i == 3:
            qpair(SG, XBr + 0, QACC, True); qpair(SG + 8, XBr + 1, QACC, False)
            qpair(P1, XBr + 2, QACC, False); qpair(P1 + 8, XBr + 3, QACC, False)
            set_stage_wq(2)
        elif i in (4, 5):
            rnd = i - 2
            qpair(SG, XBr + 2 * rnd, QACC, False); qpair(SG + 8, XBr + 2 * rnd + 1, QACC, False)
            set_stage_wq(rnd + 1)
            if i == 4:
                if not loopbar: a('s_barrier')
                a('s_cmp_lg_u32 s%d, 0' % S_W)
                a('s_cbranch_scc1 L_next')
                a('s_lshl_b32 s%d, s%d, 2' % (S_T0, S_B))
                a('v_mov_b32 v%d, 0' % (T + 1))
                a('v_mov_b32 v%d, 1' % T)
                a('s_mov_b64 exec, 1')
                a('buffer_atomic_add v%d, v%d, %s, s%d offen' % (T, T + 1, srd(DBG), S_T0))
                a('s_mov_b64 exec, -1')
        elif i == 6:
            qpair(SG, XBr + 8, QACC, False); qpair(SG + 8, XBr + 9, QACC, False)
            qproj_finish(QACC, QBB)
            for k in range(3):
                a('s_mov_b32 s%d, s%d' % (KN + k, KB + k))
                a('s_mov_b32 s%d, s%d' % (VN + k, VB + k))
            a('s_sub_u32 s%d, s%d, 32768' % (S_OFF, S_WOFF))
            set_stage_wo(WOA, 0)
        elif i == 7:
            pair_stage(0)
            set_stage_wo(WOA, 1)
            a('s_branch L_combine')
            a.label('L_combine_retA')
            load_q(QBB)
            init_state()
        elif 8 <= i <= 10:
            pair_stage(i - 7)
            set_stage_wo(WOA, i - 6)
        elif i == 11:
            pair_stage(4)
            stage_null()
        elif i == 12:
            set_stage_wo(WOB, 0)
            a('s_branch L_project')
            a.label('L_project_retA')
            a('s_mov_b32 s%d, 1' % S_SIDE)
        elif 13 <= i <= 16:
            pair_stage(i - 13)
            set_stage_wo(WOB, i - 12)
        elif i == 17:
            pair_stage(4)
            stage_null()
        a('s_branch L_next')
    a('s_branch L_next')
    for i in range(first_it, LAST_SIDE):
        side(i)
    a.label('L_late')
    a.vq = list(ring)
    a('s_cmp_lt_u32 s%d, 38' % S_IT)
    a('s_cbranch_scc1 L_next')
    a('s_cmp_eq_u32 s%d, 39' % S_IT)
    a('s_cbranch_scc1 L_done')
    a('s_mov_b32 s%d, 0' % (KN + 2))
    a('s_mov_b32 s%d, 0' % (VN + 2))
    a('s_lshl_b32 s%d, s%d, 2' % (S_T0, S_B))
    a('v_mov_b32 v%d, 0' % (T + 1))
    a('buffer_load_dword v%d, v%d, %s, s%d offen sc1' % (V_CNT, T + 1, srd(DBG), S_T0))
    a('s_branch L_next')
    a.label('L_done')
    stamp(3)
    a('s_nop 1')
    a.label('L_combine')
    combine(OA, OA + 1)
    a('s_cmp_eq_u32 s%d, 0' % S_SIDE)
    a('s_cbranch_scc1 L_combine_retA')
    stamp(4)
    a('s_nop 1')
    a.label('L_project')
    project(W, OA, OA + 1)
    a('s_cmp_eq_u32 s%d, 0' % S_SIDE)
    a('s_cbranch_scc1 L_project_retA')
    stamp(5)
    a('s_cmp_eq_u32 s%d, 5' % S_W)
    a('s_cbranch_scc1 L_finA')
    a('s_cmp_lg_u32 s%d, 6' % S_W)
    a('s_cbranch_scc1 L_fin_end')
    a('s_cmp_ge_u32 s%d, 20' % S_H)
    a('s_cbranch_scc1 L_fin_end')
    a('s_lshl_b32 s%d, s%d, 7' % (S_T1, S_H))
    a('s_add_u32 s%d, s%d, 2560' % (S_T1, S_T1))
    a('s_branch L_fin')
    a.label('L_finA')
    a('s_cmp_lt_u32 s%d, 12' % S_H)
    a('s_cbranch_scc1 L_fin_end')
    a('s_sub_u32 s%d, s%d, 12' % (S_T1, S_H))
    a('s_lshl_b32 s%d, s%d, 7' % (S_T1, S_T1))
    a.label('L_fin')
    a('s_mov_b32 s%d, %d' % (S_SPIN, spin_limit))
    a('s_lshl_b32 s%d, s%d, 2' % (S_T0, S_B))
    a('v_mov_b32 v%d, 0' % (T + 1))
    a.label('L_cnt')
    a('s_waitcnt vmcnt(0)')
    a('v_readfirstlane_b32 s%d, v%d' % (S_TS, V_CNT))
    a('s_cmp_ge_u32 s%d, 32' % S_TS)
    a('s_cbranch_scc1 L_cnt_ok')
    a('s_sub_u32 s%d, s%d, 1' % (S_SPIN, S_SPIN))
    a('s_cbranch_scc1 L_fin_end')
    a('buffer_load_dword v%d, v%d, %s, s%d offen sc1' % (V_CNT, T + 1, srd(DBG), S_T0))
    a('s_branch L_cnt')
    a.label('L_cnt_ok')
    a('v_lshrrev_b32 v%d, 7, v%d' % (T, V_KV))
    a('v_mul_u32_u24 v%d, 5120, v%d' % (T, T))
    a('v_and_b32 v%d, 0x70, v%d' % (T + 1, V_KV))
    a('v_add_u32 v%d, v%d, v%d' % (T, T, T + 1))
    a('s_mul_i32 s%d, s%d, 163840' % (S_T0, S_B))
    a('s_add_u32 s%d, s%d, s%d' % (S_T0, S_T0, S_T1))
    for i in range(1, 4):
        a('s_add_u32 s%d, s%d, %d' % (32 + i, S_T0, i * 40960))
    a.label('L_poll')
    for i in range(4):
        a('buffer_load_dwordx4 %s, v%d, %s, s%d offen sc1' % (vq(SG + 4 * i), T, srd(WS), S_T0 if i == 0 else 32 + i))
    a('s_waitcnt vmcnt(0)')
    R = SG
    a('v_max3_u32 v%d, v%d, v%d, v%d' % (T + 2, R, R + 1, R + 2))
    for i in range(3, 15, 2):
        a('v_max3_u32 v%d, v%d, v%d, v%d' % (T + 2, T + 2, R + i, R + i + 1))
    a('v_max_u32 v%d, v%d, v%d' % (T + 2, T + 2, R + 15))
    a('v_cmp_eq_u32 vcc, -1, v%d' % (T + 2))
    a('s_nop 4')
    a('s_cbranch_vccz L_got')
    a('s_sub_u32 s%d, s%d, 1' % (S_SPIN, S_SPIN))
    a('s_cbranch_scc1 L_fin_end')
    a('s_sleep 2')
    a('s_branch L_poll')
    a.label('L_got')
    for i in (8, 4):
        for r in range(0, i, 2):
            a('v_pk_add_f32 v[%d:%d], v[%d:%d], v[%d:%d]' % (R + r, R + r + 1, R + r, R + r + 1, R + r + i, R + r + i + 1))
    for r in range(4):
        a('v_add_f32_dpp v%d, v%d, v%d row_ror:8 row_mask:0xf bank_mask:0xf' % (R + r, R + r, R + r))
    a('v_permlane32_swap_b32 v%d, v%d' % (R, R + 2))
    a('v_permlane32_swap_b32 v%d, v%d' % (R + 1, R + 3))
    a('v_add_f32 v%d, v%d, v%d' % (R, R, R + 2))
    a('v_add_f32 v%d, v%d, v%d' % (R + 1, R + 1, R + 3))
    a('v_mov_b32 v%d, v%d' % (R + 2, R))
    a('v_mov_b32 v%d, v%d' % (R + 3, R + 1))
    a('v_permlane16_swap_b32 v%d, v%d' % (R, R + 2))
    a('v_permlane16_swap_b32 v%d, v%d' % (R + 1, R + 3))
    a('v_add_f32 v%d, v%d, v%d' % (R, R, R + 2))
    a('v_add_f32 v%d, v%d, v%d' % (R + 1, R + 1, R + 3))
    a('v_cvt_pk_bf16_f32 v%d, v%d, v%d' % (R, R, R + 1))
    a('v_lshrrev_b32 v%d, 1, v%d' % (T + 1, T + 1))
    a('v_lshrrev_b32 v%d, 9, v%d' % (T + 2, V_KV))
    a('v_lshl_add_u32 v%d, v%d, 2, v%d' % (T + 1, T + 2, T + 1))
    a('s_mul_i32 s%d, s%d, 2560' % (S_T0, S_B))
    a('s_lshr_b32 s%d, s%d, 1' % (S_T1, S_T1))
    a('s_add_u32 s%d, s%d, s%d' % (S_T0, S_T0, S_T1))
    a('s_mov_b32 exec_lo, 0xff')
    a('s_mov_b32 exec_hi, 0xff')
    a('buffer_store_dword v%d, v%d, %s, s%d offen' % (R, T + 1, srd(OUT), S_T0))
    a('s_mov_b64 exec, -1')
    a.label('L_fin_end')
    stamp(6)
    stamp_flush()
    a.label('L_end')
    a('s_endpgm')

    out = HEADER
    out += '; @launch grid=(256,1,1) block=(512,1,1) lds=%d\n' % lds
    out += '.amdgcn_target "amdgcn-amd-amdhsa--gfx950"\n.text\n.globl %s_kernel\n.p2align 8\n.type %s_kernel,@function\n%s_kernel:\n' % (NAME, NAME, NAME)
    out += a.text()
    out += """.section .rodata,"a"
.p2align 6
.amdhsa_kernel %s_kernel
  .amdhsa_next_free_vgpr %d
  .amdhsa_next_free_sgpr 102
  .amdhsa_accum_offset %d
  .amdhsa_group_segment_fixed_size 0
  .amdhsa_kernarg_size 104
  .amdhsa_user_sgpr_count 2
  .amdhsa_user_sgpr_kernarg_segment_ptr 1
  .amdhsa_system_sgpr_workgroup_id_x 1
.end_amdhsa_kernel
""" % (NAME, NVGPR, (NVGPR + 3) // 4 * 4)
    return out

if __name__ == '__main__':
    ap = argparse.ArgumentParser()
    ap.add_argument('-o', default='cdna_kernels/%s.s' % NAME)
    ap.add_argument('--timing', type=int, default=0)
    ap.add_argument('--mimic', type=int, default=1)
    ap.add_argument('--loopbar', type=int, default=1)
    ap.add_argument('--lds', type=int, default=90112)
    args = ap.parse_args()
    open(args.o, 'w').write(gen(timing=args.timing, mimic=args.mimic, loopbar=args.loopbar, lds=args.lds))
```
